```python
import torch

def _softmax(x, axis=-1):
    return torch.softmax(x, dim=axis)
def _gelu(x):
    return torch.nn.functional.gelu(x, approximate="tanh")
def _silu(x):
    return torch.nn.functional.silu(x)
def _sigmoid(x):
    return torch.sigmoid(x)
def _layernorm(x, axis=-1, eps=1e-5):
    m = x.mean(dim=axis, keepdim=True)
    v = x.var(dim=axis, keepdim=True, unbiased=False)
    return (x - m) / torch.sqrt(v + eps)
def _scatter_add(tgt, idx, src, axis=0):
    return tgt.clone().index_add_(axis, idx, src)
def _segment_sum(src, seg, n):
    out = torch.zeros((n,) + src.shape[1:], dtype=src.dtype)
    return out.index_add_(0, seg, src)
def _pad(x, pw):
    flat = tuple(v for pair in reversed(pw) for v in pair)
    return torch.nn.functional.pad(x, flat)

kernel_name = 'sequential_preLN__ssm_conv_s4d__swiglu_ffn__prompt'

def setup_inputs():

    _w = (lambda a: (lambda t: t.to(torch.bfloat16) if t.is_floating_point() else t)(torch.as_tensor(a)))
    def _A_setup():
        Bsz, L, D, N = 1, 2048, 448, 256
        return {
            "u": _w((lambda *s: torch.randn(*s, dtype=torch.bfloat16) * 0.05)(Bsz, L, D)),
            "log_A_real": _w((lambda *s: torch.randn(*s, dtype=torch.bfloat16) * 6.4)(D, N) * 0.5),
            "A_imag": _w((lambda *s: torch.randn(*s, dtype=torch.bfloat16) * 0.05)(D, N) * 3.14),
            "C_real": _w((lambda *s: torch.randn(*s, dtype=torch.bfloat16) * 0.05)(D, N) / N ** 0.5),
            "C_imag": _w((lambda *s: torch.randn(*s, dtype=torch.bfloat16) * 0.05)(D, N) / N ** 0.5),
            "log_dt": _w((lambda *s: torch.randn(*s, dtype=torch.bfloat16) * 0.05)(D) * 0.5 - 4.0),
            "D_skip": _w((lambda *s: torch.randn(*s, dtype=torch.bfloat16) * 0.05)(D)),
        }
    _A_in = _A_setup()

    def _B_setup():
        B, S, D, F = 1, 2048, 448, 1792
        return {
            "x": _w((lambda *s: torch.randn(*s, dtype=torch.bfloat16) * 0.05)(B, S, D)),
            "w_gate": _w((lambda *s: torch.randn(*s, dtype=torch.bfloat16) * 0.05)(D, F)),
            "w_up": _w((lambda *s: torch.randn(*s, dtype=torch.bfloat16) * 0.05)(D, F)),
            "w_down": _w((lambda *s: torch.randn(*s, dtype=torch.bfloat16) * 0.05)(F, D)),
        }
    _B_in = _B_setup()

    return {
        "A_u": _A_in["u"],
        "A_log_A_real": _A_in["log_A_real"],
        "A_A_imag": _A_in["A_imag"],
        "A_C_real": _A_in["C_real"],
        "A_C_imag": _A_in["C_imag"],
        "A_log_dt": _A_in["log_dt"],
        "A_D_skip": _A_in["D_skip"],
        "B_x": _B_in["x"],
        "B_w_gate": _B_in["w_gate"],
        "B_w_up": _B_in["w_up"],
        "B_w_down": _B_in["w_down"],
    }

def reference(A_u, A_log_A_real, A_A_imag, A_C_real, A_C_imag, A_log_dt, A_D_skip, B_x, B_w_gate, B_w_up, B_w_down):
    def _A_ref(u, log_A_real, A_imag, C_real, C_imag, log_dt, D_skip):
        L = u.shape[1]
        dt = torch.exp(log_dt)
        A = -torch.exp(log_A_real) + 1j * A_imag
        C = (C_real + 1j * C_imag) * dt[:, None]
        pos = (lambda x, dt: x.to(dt))(torch.arange(L), log_dt.dtype)
        P = torch.exp((A * dt[:, None])[:, :, None] * pos[None, None, :])
        K = 2.0 * torch.einsum("dn,dnl->dl", C, P).real
        L2 = 2 * L
        u_t = (lambda x, *d: x.permute(*d))(u, 0, 2, 1)
        Kf = (lambda x, *a, **k: torch.fft.rfft(x.float(), *a, **k))(K, L2)
        Uf = (lambda x, *a, **k: torch.fft.rfft(x.float(), *a, **k))(u_t, L2)
        y = (lambda x, *a, **k: torch.fft.irfft(x, *a, **k).to(torch.bfloat16))(Uf * Kf[None, :, :], L2)[:, :, :L]
        y = (lambda x, *d: x.permute(*d))(y, 0, 2, 1)
        return y + u * D_skip[None, None, :]

    def _B_ref(x, w_gate, w_up, w_down):
        g = _silu(x @ w_gate)
        u = x @ w_up
        return (g * u) @ w_down

    x = A_u
    h = x + _A_ref(_layernorm(x, axis=-1), A_log_A_real, A_A_imag, A_C_real, A_C_imag, A_log_dt, A_D_skip)
    h2 = h + _B_ref(_layernorm(h, axis=-1), B_w_gate, B_w_up, B_w_down)
    return h2
```

```python
import re

REG_RE = re.compile(r'^(-|\|)?([vas])(\d+)\|?$')
RNG_RE = re.compile(r'^(-|\|)?([vas])\[(\d+):(\d+)\]\|?$')

def regs_of(tok):
    tok = tok.strip()
    if tok.startswith('abs(') or tok.startswith('neg('):
        tok = tok[4:-1]
    m = REG_RE.match(tok)
    if m: return {(m.group(2), int(m.group(3)))}
    m = RNG_RE.match(tok)
    if m: return {(m.group(2), i) for i in range(int(m.group(3)), int(m.group(4))+1)}
    if tok == 'vcc': return {('s','vcc')}
    if tok in ('vcc_lo','vcc_hi'): return {('s','vcc')}
    if tok == 'exec': return {('s','exec')}
    if tok == 'm0': return {('s','m0')}
    return set()

def split_ops(rest):
    ops=[]; depth=0; cur=''
    for ch in rest:
        if ch in '[(': depth+=1
        if ch in '])': depth-=1
        if ch==',' and depth==0:
            ops.append(cur.strip()); cur=''
        else: cur+=ch
    if cur.strip(): ops.append(cur.strip())
    mods=''
    if ops:
        last=ops[-1]
        parts=last.split(None,1)
        if len(parts)==2:
            ops[-1]=parts[0]; mods=parts[1]
    return ops, mods

TRANS = ('v_exp_f32','v_log_f32','v_rcp_f32','v_rsq_f32','v_sqrt_f32','v_sin_f32','v_cos_f32','v_rcp_iflag_f32')

class Ins:
    __slots__=('text','op','ops','mods','w','r','kind','passes','cdst','csrc')
    def __init__(self, text):
        self.text=text
        t=text.strip()
        sp=t.split(None,1)
        self.op=sp[0]
        rest=sp[1] if len(sp)>1 else ''
        self.ops,self.mods=split_ops(rest)
        self.w=set(); self.r=set(); self.kind='other'; self.passes=0; self.csrc=set()
        op=self.op; ops=self.ops
        R=lambda i: regs_of(ops[i]) if i<len(ops) else set()
        allr=lambda a: set().union(*[regs_of(o) for o in ops[a:]]) if len(ops)>a else set()
        base=op.replace('_e32','').replace('_e64','').replace('_dpp','').replace('_sdwa','')
        if op.startswith('v_mfma'):
            self.kind='mfma'; self.w=R(0); self.r=R(1)|R(2)|R(3); self.csrc=R(3)
            self.passes = 8 if '32x32' in op else 4
        elif op.startswith('v_cmpx'):
            self.kind='valu'; self.w=R(0)|{('s','exec')}; self.r=allr(1)
        elif op.startswith('v_cmp'):
            self.kind='valu'; self.w=R(0); self.r=allr(1)
        elif op.startswith('v_readfirstlane') or op.startswith('v_readlane'):
            self.kind='valu'; self.w=R(0); self.r=allr(1)
        elif op.startswith('v_permlane') and 'swap' in op:
            self.kind='valu'; self.w=R(0)|R(1); self.r=R(0)|R(1)
        elif base in ('v_add_co_u32','v_sub_co_u32','v_subrev_co_u32','v_addc_co_u32','v_subb_co_u32'):
            self.kind='valu'; self.w=R(0)|R(1); self.r=allr(2)
        elif op.startswith('v_'):
            self.kind='trans' if base in TRANS else 'valu'
            self.w=R(0); self.r=allr(1)
            if base in ('v_fmac_f32','v_dot2c_f32_bf16','v_pk_fmac_f16','v_writelane_b32') or ('dpp' in op) or ('quad_perm' in self.mods or 'row_' in self.mods):
                self.r|=R(0)
            if base=='v_cndmask_b32' and len(ops)==3: self.r|={('s','vcc')}
        elif op.startswith('ds_read') or op.startswith('ds_bpermute') or op.startswith('ds_swizzle'):
            self.kind='ds'; self.w=R(0); self.r=allr(1)
            if 'd16' in op: self.r|=R(0)
        elif op.startswith('ds_'):
            self.kind='ds'; self.r=allr(0)
        elif op.startswith('buffer_load') or op.startswith('global_load'):
            self.kind='vmem'
            if ' lds' in (' '+self.mods) or '_lds_' in op:
                self.r=allr(0)|{('s','m0')}; self.kind='vmem_lds'
            else:
                self.w=R(0); self.r=allr(1)
        elif op.startswith('buffer_store') or op.startswith('global_store'):
            self.kind='vmem_st'; self.r=allr(0)
        elif op.startswith('buffer_atomic') or op.startswith('global_atomic'):
            self.kind='vmem'; self.r=allr(0)
            if 'sc0' in self.mods: self.w=R(0)
        elif op.startswith('s_load') or op.startswith('s_buffer_load') or op in ('s_memtime','s_memrealtime'):
            self.kind='smem'; self.w=R(0); self.r=allr(1)
        elif op=='s_nop':
            self.kind='nop'
        elif op.startswith('s_cmp') or op.startswith('s_cbranch') or op in ('s_branch','s_barrier','s_waitcnt','s_endpgm','s_sleep','s_setprio'):
            self.kind='salu'; self.r=allr(0)
        elif op.startswith('s_'):
            self.kind='salu'; self.w=R(0); self.r=allr(1)
            if 'saveexec' in op: self.w|={('s','exec')}; self.r|={('s','exec')}
    def states(self):
        if self.op=='s_nop': return int(self.ops[0],0)+1
        return 1
    def is_valu(self): return self.kind in ('valu','trans')

def vregs(s): return {x for x in s if x[0] in 'va'}
def sregs(s): return {x for x in s if x[0]=='s'}

def required(p, c):
    need=0
    pv=p.is_valu()
    cv=c.is_valu()
    if p.kind=='mfma':
        n = 12 if p.passes==8 else 8
        if c.kind=='mfma':
            ab = regs_of(c.ops[1])|regs_of(c.ops[2])
            if p.w & ab: need=max(need,n)
            if p.w & c.csrc:
                if not (p.w==c.csrc and p.passes==c.passes): need=max(need, 10 if p.passes==8 else 6)
            elif p.w & c.w:
                need=max(need,n)
        else:
            if p.w & (c.r|c.w): need=max(need,n)
            if cv and (p.csrc & c.w): need=max(need, 7 if p.passes==8 else 3)
    if pv:
        if c.kind=='mfma' and (vregs(p.w) & c.r): need=max(need,2)
        if p.kind=='trans' and cv and (p.w & c.r): need=max(need,1)
        sw=sregs(p.w)
        if sw:
            if cv and (sw & c.r): need=max(need,2)
            if c.kind in ('vmem','vmem_lds','vmem_st') and (sw & c.r): need=max(need,5)
            if c.kind in('salu','smem') and (sw & c.r): need=max(need,1)
            if c.op.startswith('v_readlane') or c.op.startswith('v_writelane'):
                if sw & c.r: need=max(need,4)
            if ('s','exec') in sw:
                if c.kind=='mfma': need=max(need,4)
                if 'dpp' in c.op or 'quad_perm' in c.mods or 'row_' in c.mods: need=max(need,5)
                if c.op.startswith('v_readfirstlane') or c.op.startswith('v_permlane'): need=max(need,4)
        vw=vregs(p.w)
        if vw & c.r:
            if c.op.startswith('v_readfirstlane') or c.op.startswith('v_readlane'): need=max(need,1)
            if 'dpp' in c.op or 'quad_perm' in c.mods or 'row_' in c.mods: need=max(need,2)
            if c.op.startswith('v_permlane'): need=max(need,2)
    if p.op.startswith('v_dot'):
        same = c.op.split('_e')[0]==p.op.split('_e')[0]
        if same:
            ab=set()
            for o in c.ops[1:3]: ab|=regs_of(o)
            if p.w & ab: need=max(need,3)
        elif p.w & (c.r|c.w): need=max(need,3)
    if p.kind=='vmem_st' and ('x4' in p.op or 'x3' in p.op):
        data=regs_of(p.ops[0]) if p.op.startswith('buffer') else regs_of(p.ops[1])
        if data & c.w: need=max(need, 2 if cv else 1)
    if p.kind=='salu' and ('s','m0') in p.w and c.kind=='vmem_lds': need=max(need,1)
    return need

class Asm:
    def __init__(self):
        self.items=[]
    def __call__(self, text):
        for line in text.strip('\n').split('\n'):
            s=line.split(';')[0].strip()
            if not s: continue
            if s.endswith(':'): self.items.append(('label',s[:-1]))
            elif s.startswith('.'): self.items.append(('raw',s))
            else: self.items.append(Ins(s))
    def label(self,n): self.items.append(('label',n))
    def raw(self,t): self.items.append(('raw',t))
    def finalize(self, window=24):
        out=[]; nn=0
        hist=[]
        def need_for(c, hist):
            dist=0; need=0
            for p in reversed(hist[-window:]):
                r=required(p,c)
                if r>dist: need=max(need,r-dist)
                dist+=p.states()
                if dist>=20: break
            return need
        labels={}
        for it in self.items:
            if isinstance(it,Ins):
                n=need_for(it,hist)
                while n>0:
                    k=min(n,16); nop=Ins(f's_nop {k-1}'); out.append(nop); hist.append(nop); n-=k; nn+=1
                out.append(it); hist.append(it)
            else:
                out.append(it)
                if it[0]=='label': labels[it[1]]=len(out)
        res=[]
        idx_of={}
        for i,it in enumerate(out):
            if not isinstance(it,Ins) and it[0]=='label': idx_of[it[1]]=i
        extra={}
        for i,it in enumerate(out):
            if isinstance(it,Ins) and (it.op.startswith('s_cbranch') or it.op=='s_branch'):
                tgt=it.ops[0]
                if tgt in idx_of:
                    j=idx_of[tgt]
                    tail=[x for x in out[max(0,i-window):i+1] if isinstance(x,Ins)]
                    head=[x for x in out[j:j+window] if isinstance(x,Ins)]
                    h=list(tail); worst=0
                    acc=0
                    for c in head:
                        n=need_for(c,h)
                        if n>worst: worst=n
                        h.append(c); acc+=c.states()
                        if acc>=20: break
                    if worst>0: extra[i]=worst
        for i,it in enumerate(out):
            if i in extra:
                n=extra[i]
                res.append(Ins(f's_nop {min(n,16)-1}')); nn+=1
            res.append(it)
        txt=[]
        for it in res:
            if isinstance(it,Ins): txt.append('    '+it.text)
            elif it[0]=='label': txt.append(it[1]+':')
            else: txt.append(it[1])
        self.nnops=nn
        self.ninstr=sum(1 for x in res if isinstance(x,Ins))
        self.nbytes_est=8*self.ninstr
        return '\n'.join(txt)+'\n'
```

```python
from gen import *

LOG2E = 0x3fb8aa3b
INV2PI = 0x3e22f983

def cmul(a, z, p, q):
    a(f"v_pk_mul_f32 v[{z}:{z+1}], v[{p}:{p+1}], v[{q}:{q+1}] op_sel:[0,0] op_sel_hi:[0,1]")
    a(f"v_pk_fma_f32 v[{z}:{z+1}], v[{p}:{p+1}], v[{q}:{q+1}], v[{z}:{z+1}] op_sel:[1,1,0] op_sel_hi:[1,0,1] neg_lo:[0,1,0]")

def cmul2(a, z, p, q):
    for j in range(2):
        o=40*j
        a(f"v_pk_mul_f32 v[{z+o}:{z+o+1}], v[{p+o}:{p+o+1}], v[{q+o}:{q+o+1}] op_sel:[0,0] op_sel_hi:[0,1]")
    for j in range(2):
        o=40*j
        a(f"v_pk_fma_f32 v[{z+o}:{z+o+1}], v[{p+o}:{p+o+1}], v[{q+o}:{q+o+1}], v[{z+o}:{z+o+1}] op_sel:[1,1,0] op_sel_hi:[1,0,1] neg_lo:[0,1,0]")

class Rot:
    def __init__(s,base,n,step): s.base,s.n,s.step,s.i=base,n,step,0
    def next(s):
        r=s.base+s.step*(s.i%s.n); s.i+=1; return r

def phaseB(a, cfg):
    R=80
    AL,BE,E1,E2,E4,W8,E256,X0 = R,R+1,R+2,R+4,R+6,R+8,R+10,R+12
    CA=R+14
    MM=R+22
    CB=R+24
    TT=R+32
    pk=Rot(160,8,2)
    a(f"""
    s_waitcnt lgkmcnt(0)
    s_lshr_b32 s{T3}, s{S_WAVE}, 1
    s_lshl_b32 s{T3}, s{T3}, 4
    s_lshr_b32 s{T4}, s{S_LDT}, s{T3}
    s_lshl_b32 s{T4}, s{T4}, 16
    v_mov_b32 v76, {LOG2E}
    v_mul_f32 v76, s{T4}, v76
    v_exp_f32 v76, v76
    v_cvt_pk_bf16_f32 v76, v76, v76
    v_lshlrev_b32 v76, 16, v76
    v_mul_f32 v77, 0xbfb8aa3b, v76         ; -dt*log2e
    v_mul_f32 v78, {INV2PI}, v76           ; dt/(2pi)
    v_add_f32 v79, v76, v76                ; 2dt
    s_waitcnt vmcnt(4)
    """)
    for j in range(2):
        o=40*j
        un=(lambda d,s: f"v_lshlrev_b32 v{d}, 16, v{s}") if j==0 else (lambda d,s: f"v_and_b32 v{d}, 0xffff0000, v{s}")
        a(un(TT+o,66)); a(un(BE+o,67)); a(un(X0+o,68)); a(un(X0+1+o,69))
        a(f"v_mul_f32 v{TT+o}, {LOG2E}, v{TT+o}")
        a(f"v_exp_f32 v{TT+o}, v{TT+o}")
    a(f"v_cvt_pk_bf16_f32 v{TT+1}, v{TT}, v{TT+40}")
    a(f"v_lshlrev_b32 v{AL}, 16, v{TT+1}")
    a(f"v_and_b32 v{AL+40}, 0xffff0000, v{TT+1}")
    for j in range(2):
        o=40*j
        a(f"""
        v_mul_f32 v{AL+o}, v{AL+o}, v77
        v_mul_f32 v{BE+o}, v{BE+o}, v78
        v_mul_f32 v{X0+o}, v{X0+o}, v79
        v_mul_f32 v{X0+1+o}, v{X0+1+o}, v79
        """)
    for (dst,mul) in ((E1,None),(E256,256.0)):
        for j in range(2):
            o=40*j
            if mul:
                a(f"v_mul_f32 v{TT+o}, 0x43800000, v{AL+o}")
                a(f"v_mul_f32 v{TT+1+o}, 0x43800000, v{BE+o}")
                a(f"v_exp_f32 v{TT+o}, v{TT+o}")
                a(f"v_fract_f32 v{TT+1+o}, v{TT+1+o}")
            else:
                a(f"v_exp_f32 v{TT+o}, v{AL+o}")
                a(f"v_fract_f32 v{TT+1+o}, v{BE+o}")
            a(f"v_cos_f32 v{TT+2+o}, v{TT+1+o}")
            a(f"v_sin_f32 v{TT+3+o}, v{TT+1+o}")
        for j in range(2):
            o=40*j
            a(f"v_mul_f32 v{dst+o}, v{TT+o}, v{TT+2+o}")
            a(f"v_mul_f32 v{dst+1+o}, v{TT+o}, v{TT+3+o}")
    cmul2(a,E2,E1,E1); cmul2(a,E4,E2,E2); cmul2(a,W8,E4,E4)
    a(f"""
    s_mul_i32 s{T3}, s{S_WAVE}, {KG_WAVE}
    s_add_u32 s{T3}, s{T3}, {KG_OFF}
    v_lshl_add_u32 v75, v1, 3, s{T3}
    """)
    def wrow(row, src, neg):
        p=pk.next()
        n='-' if neg else ''
        a(f"v_cvt_pk_bf16_f32 v{p}, v{src}, {n}v{src+1}")
        a(f"v_cvt_pk_bf16_f32 v{p+1}, v{src+40}, {n}v{src+41}")
        a(f"ds_write_b64 v75, v[{p}:{p+1}] offset:{row*KG_ROW}")
    p=pk.next()
    a(f"v_mov_b32 v{p}, 0x3f80\nv_mov_b32 v{p+1}, 0x3f80")
    a(f"ds_write_b64 v75, v[{p}:{p+1}] offset:0")
    cmul2(a,CA+4,W8,W8)
    cmul2(a,CA+6,CA+4,W8)
    cmul2(a,MM,CA+4,CA+4)
    wrow(1,W8,True); wrow(2,CA+4,True); wrow(3,CA+6,True)
    cur=[None,W8,CA+4,CA+6]
    for g in range(1,8):
        dstb = CB if g%2==1 else CA
        for c in range(4):
            dst=dstb+2*c
            if g==1 and c==0:
                wrow(4,MM,True); cur[0]=MM
                continue
            if g==2 and c==0:
                cmul2(a,dst,MM,MM)
            else:
                cmul2(a,dst,cur[c],MM)
            cur[c]=dst
            wrow(4*g+c,dst,True)
    a(f"""
    v_and_b32 v156, 31, v1
    v_mul_u32_u24 v156, {KG_ROW}, v156
    v_lshrrev_b32 v157, 5, v1
    v_lshl_add_u32 v156, v157, 4, v156
    v_add_u32 v156, s{T3}, v156
    s_waitcnt lgkmcnt(0)
    """)
    for s in range(16):
        a(f"ds_read_b128 v[{176+4*s}:{179+4*s}], v156 offset:{32*s}")
        if s==11: a("s_waitcnt lgkmcnt(8)")
    XA=CA; XB=CB
    xs=[X0, CA, CA+2, CA+4, CA+6, CB, CB+2, CB+4]
    cmul2(a,xs[1],X0,E1)
    cmul2(a,xs[2],X0,E2)
    cmul2(a,xs[3],xs[1],E2)
    cmul2(a,xs[4],X0,E4)
    cmul2(a,xs[5],xs[1],E4)
    cmul2(a,xs[6],xs[2],E4)
    cmul2(a,xs[7],xs[3],E4)
    a("s_waitcnt lgkmcnt(0)")
    for i in range(8): wrow(i,xs[i],False)
    x256,x258,x260,x262,x512,x516,x768,x772 = CA,CA+2,CA+4,CA+6,CB,CB+2,CB+4,CB+6
    cmul2(a,x256,X0,E256); wrow(8,x256,False)
    cmul2(a,x512,x256,E256)
    cmul2(a,x258,x256,E2); wrow(9,x258,False)
    cmul2(a,x260,x256,E4); wrow(10,x260,False)
    cmul2(a,x768,x512,E256)
    cmul2(a,x262,x258,E4); wrow(11,x262,False)
    wrow(12,x512,False)
    cmul2(a,x516,x512,E4); wrow(13,x516,False)
    wrow(14,x768,False)
    cmul2(a,x772,x768,E4); wrow(15,x772,False)
    chain=[CA,CA+2,CA+4,CA+6,MM]
    prev=x768
    for i,dst in enumerate(chain):
        cmul2(a,dst,prev,E256); wrow(16+i,dst,False); prev=dst
    a("s_waitcnt lgkmcnt(0)")
    for s in range(16):
        r=2+4*s
        a(f"ds_read_b128 v[{r}:{r+3}], v156 offset:{32*s}")
        if s==11: a("s_waitcnt lgkmcnt(8)")
    for s in range(16):
        if s==4: a("s_waitcnt lgkmcnt(4)")
        if s==0: a("s_waitcnt lgkmcnt(12)") if False else None
        if s==12: a("s_waitcnt lgkmcnt(0)")
        r=2+4*s
        c = "0" if s==0 else "a[0:15]"
        if s==8: a("s_waitcnt lgkmcnt(0)")
        a(f"v_mfma_f32_32x32x16_bf16 a[0:15], v[{r}:{r+3}], v[{176+4*s}:{179+4*s}], {c}")
    a(f"""
    s_mul_i32 s{T3}, s{S_WAVE}, 3072
    s_add_u32 s{T3}, s{T3}, {TP_OFF}
    v_and_b32 v76, 31, v1
    v_lshlrev_b32 v76, 2, v76
    v_lshrrev_b32 v77, 5, v1
    v_lshl_add_u32 v76, v77, 9, v76
    v_add_u32 v76, s{T3}, v76
    """)
    for v in range(12):
        a(f"ds_write_b32 v76, a{v} offset:{(8*(v>>2)+(v&3))*128}")
    a("s_waitcnt lgkmcnt(0)")
    a("s_barrier")
    a(f"""
    v_lshlrev_b32 v76, 3, v0
    v_lshrrev_b32 v77, 7, v0
    v_and_b32 v78, 127, v0
    v_add_u32 v78, 256, v78
    v_mul_u32_u24 v79, 6144, v77
    v_lshl_add_u32 v79, v78, 3, v79
    v_mul_u32_u24 v80, {TF_CH}, v77
    v_lshl_add_u32 v80, v78, 2, v80
    v_lshlrev_b32 v81, 2, v0
    ds_read_b64 v[82:83], v76 offset:{TP_OFF}
    ds_read_b64 v[84:85], v76 offset:{TP_OFF+3072}
    ds_read_b64 v[86:87], v76 offset:{TP_OFF+6144}
    ds_read_b64 v[88:89], v76 offset:{TP_OFF+9216}
    ds_read_b64 v[90:91], v79 offset:{TP_OFF}
    ds_read_b64 v[92:93], v79 offset:{TP_OFF+3072}
    v_and_b32 v94, 1, v0
    v_mul_u32_u24 v94, {TF_CH}, v94
    v_mov_b32 v95, 0
    ds_write_b32 v94, v95 offset:{TF_OFF+1536}
    s_waitcnt lgkmcnt(0)
    v_add_f32 v82, v82, v84
    v_add_f32 v83, v83, v85
    v_add_f32 v86, v86, v88
    v_add_f32 v87, v87, v89
    v_add_f32 v90, v90, v92
    v_add_f32 v91, v91, v93
    v_cvt_pk_bf16_f32 v82, v82, v83
    v_cvt_pk_bf16_f32 v86, v86, v87
    v_cvt_pk_bf16_f32 v90, v90, v91
    ds_write_b32 v81, v82 offset:{TF_OFF}
    ds_write_b32 v81, v86 offset:{TF_OFF+TF_CH}
    ds_write_b32 v80, v90 offset:{TF_OFF}
    s_waitcnt lgkmcnt(0)
    s_barrier
    """)
    for i in range(9):
        src=70+(i>>1)
        a(f"v_and_b32 v{76+i}, 0xffff, v{src}" if i%2==0 else f"v_lshrrev_b32 v{76+i}, 16, v{src}")
    for ch in range(2):
        d=86+10*ch
        for i in range(9):
            a(f"ds_read_u16 v{d+i}, v{76+i} offset:{TF_OFF+ch*TF_CH}")
        if ch==0: a("s_waitcnt lgkmcnt(4)")
    a(f"v_lshlrev_b32 v85, 4, v0")
    for ch in range(2):
        d=86+10*ch
        a(f"s_waitcnt lgkmcnt({9 if ch==0 else 2})")
        e=108+8*ch
        for j in range(4):
            a(f"v_lshl_or_b32 v{e+j}, v{d+2*j+1}, 16, v{d+2*j}")
            a(f"v_lshl_or_b32 v{e+4+j}, v{d+2*j+2}, 16, v{d+2*j+1}")
        a(f"ds_write_b128 v85, v[{e}:{e+3}] offset:{KC_OFF+ch*KC_CH+7*16}")
        a(f"ds_write_b128 v85, v[{e+4}:{e+7}] offset:{KC_OFF+ch*KC_CH+KC_COPY+7*16}")

def dumpK(a):
    a("s_waitcnt lgkmcnt(0)")
    a("s_barrier")
    srd(a, SRD_B, P_WS, WS_SIZE)
    a(f"s_mul_i32 s{T3}, s2, 16896")
    a(f"s_add_u32 s{T3}, s{T3}, {WS_DBG}")
    for m in range(5):
        a(f"v_add_u32 v76, {256*m}, v0")
        a(f"v_lshlrev_b32 v76, 4, v76")
        a(f"v_cmp_gt_u32 vcc, 16896, v76")
        a(f"s_and_saveexec_b64 s[28:29], vcc")
        a(f"s_cbranch_execz L_dk{m}")
        a(f"ds_read_b128 v[80:83], v76 offset:{KC_OFF}")
        a("s_waitcnt lgkmcnt(0)")
        a(f"buffer_store_dwordx4 v[80:83], v76, s[{SRD_B}:{SRD_B+3}], s{T3} offen")
        a(f"L_dk{m}:")
        a("s_mov_b64 exec, s[28:29]")
    a("s_waitcnt vmcnt(0)")

def phaseC_loads(a,cfg):
    for i in range(6):
        a(f"""
        v_add_u32 v16, {64*i}, v1
        v_mul_u32_u24 v17, 6554, v16
        v_lshrrev_b32 v17, 16, v17            ; block = U/10
        v_mul_u32_u24 v18, 10, v17
        v_sub_u32 v18, v16, v18               ; r
        v_lshl_add_u32 v19, v17, 3, v18       ; J
        v_lshlrev_b32 v19, 4, v19
        v_cmp_gt_u32 vcc, 8, v18
        v_mov_b32 v20, 0x10000
        v_cndmask_b32 v{10+i}, v20, v19, vcc
        """)
    a(f"""
    s_lshr_b32 s{T0}, s{S_WAVE}, 1            ; ch
    s_lshl_b32 s{T1}, s2, 1
    s_add_u32 s{T1}, s{T1}, s{T0}             ; d
    s_lshl_b32 s{T1}, s{T1}, 12               ; d*4096
    s_and_b32 s{T2}, s{S_WAVE}, 1
    s_lshl_b32 s{T2}, s{T2}, 1                ; b0 = 2*(w&1)
    s_mul_i32 s{T3}, s{T0}, {UC_CH}
    s_add_u32 s{T3}, s{T3}, {UC_OFF}
    """)
    for bb in range(2):
        a(f"""
        s_add_u32 s{T4}, s{T2}, {bb}
        s_lshl_b32 s{T5}, s{T4}, 2
        s_sub_u32 s{T5}, 12, s{T5}            ; 12-4b
        s_add_u32 s{T6}, s{T1}, s{T5}
        s_add_u32 s{SRD_A}, s{P_WS}, s{T6}
        s_addc_u32 s{SRD_A+1}, s{P_WS+1}, 0
        s_and_b32 s{SRD_A+1}, s{SRD_A+1}, 0xffff
        s_sub_u32 s{SRD_A+2}, 4096, s{T5}
        s_mov_b32 s{SRD_A+3}, 0x20000
        s_mul_i32 s{T4}, s{T4}, {UC_COPY}
        s_add_u32 s{T4}, s{T4}, s{T3}
        """)
        for i in range(6):
            a(f"s_add_u32 m0, s{T4}, {1024*i}")
            a(f"buffer_load_dwordx4 v{10+i}, s[{SRD_A}:{SRD_A+3}], 0 offen sc1 lds")
    srd(a, SRD_B, P_WS, WS_SIZE)
    a(f"""
    s_lshl_b32 s{T5}, s2, 13
    s_add_u32 s{T5}, s{T5}, {WS_XT}
    v_lshlrev_b32 v9, 4, v0
    buffer_load_dwordx4 v[176:179], v9, s[{SRD_B}:{SRD_B+3}], s{T5} offen sc1
    s_add_u32 s{T5}, s{T5}, 4096
    buffer_load_dwordx4 v[180:183], v9, s[{SRD_B}:{SRD_B+3}], s{T5} offen sc1
    """)

def phaseC(a,cfg):
    AS=[16,80]; BS=[48,112]; ACC=144
    a(f"""
    s_lshr_b32 s{T0}, s{S_WAVE}, 1            ; ch
    s_and_b32 s{T1}, s{S_WAVE}, 1             ; h2
    v_and_b32 v2, 15, v1                      ; r / col
    v_lshrrev_b32 v3, 4, v1                   ; q
    v_and_b32 v4, 1, v2
    v_mul_u32_u24 v4, {KC_COPY}, v4
    v_lshrrev_b32 v5, 1, v2
    v_add_u32 v5, v5, v3
    v_lshl_add_u32 v10, v5, 4, v4
    s_mul_i32 s{T2}, s{T0}, {KC_CH}
    s_lshl_b32 s{T3}, s{T1}, 8
    s_add_u32 s{T2}, s{T2}, s{T3}
    s_add_u32 s{T2}, s{T2}, {KC_OFF}
    v_add_u32 v10, s{T2}, v10                 ; A address
    v_and_b32 v4, 3, v2                       ; b
    v_mul_u32_u24 v4, {UC_COPY}, v4
    v_lshrrev_b32 v5, 2, v2                   ; cc
    v_mul_u32_u24 v6, 10, v5
    v_sub_u32 v6, 30, v6
    v_add_u32 v6, v6, v3
    v_lshl_add_u32 v11, v6, 4, v4
    s_mul_i32 s{T2}, s{T0}, {UC_CH}
    s_mul_i32 s{T3}, s{T1}, 320
    s_add_u32 s{T2}, s{T2}, s{T3}
    s_add_u32 s{T2}, s{T2}, {UC_OFF}
    v_add_u32 v11, s{T2}, v11                 ; B address
    v_and_b32 v4, 3, v2
    v_lshlrev_b32 v4, 3, v4                   ; 2b*4
    v_lshl_add_u32 v4, v3, 6, v4              ; +16q*4
    v_mul_u32_u24 v6, 288, v5                 ; cc*(256+32)
    v_add_u32 v4, v4, v6
    s_mul_i32 s{T2}, s{S_WAVE}, {PC_PW}
    s_add_u32 s{T2}, s{T2}, {PC_P}
    v_add_u32 v12, s{T2}, v4
    s_waitcnt vmcnt(0) lgkmcnt(0)
    s_barrier
    """)
    def reads(c):
        st=c&1; out=[]
        for j in range(8):
            out.append(f"ds_read_b128 v[{BS[st]+4*j}:{BS[st]+4*j+3}], v11 offset:{(40*(7-j)+4*c+2*(c>>1))*16}")
            out.append(f"ds_read_b128 v[{AS[st]+4*j}:{AS[st]+4*j+3}], v10 offset:{512*j+64*c}")
        return out
    r0=reads(0)
    for i,x in enumerate(r0):
        a(x)
        if i==11: a("s_waitcnt lgkmcnt(8)")
    for c in range(4):
        st=c&1
        nxt=reads(c+1) if c<3 else []
        a("s_waitcnt lgkmcnt(0)")
        n=0
        for sp in range(8):
            for t in range(sp,8):
                cc = "0" if (c==0 and sp==0) else f"v[{ACC+4*t}:{ACC+4*t+3}]"
                a(f"v_mfma_f32_16x16x32_bf16 v[{ACC+4*t}:{ACC+4*t+3}], v[{AS[st]+4*sp}:{AS[st]+4*sp+3}], v[{BS[st]+4*(t-sp)}:{BS[st]+4*(t-sp)+3}], {cc}")
                n+=1
                if n%2==0 and nxt: a(nxt.pop(0))
    for t in range(8):
        a(f"ds_write_b64 v12, v[{ACC+4*t}:{ACC+4*t+1}] offset:{1152*t}")
        a(f"ds_write_b64 v12, v[{ACC+4*t+2}:{ACC+4*t+3}] offset:{1152*t+32}")
    a(f"""
    v_lshlrev_b32 v13, 5, v0                  ; o*32
    v_lshrrev_b32 v14, 3, v0
    v_lshl_add_u32 v13, v14, 5, v13           ; + (o>>3)*32
    v_add_u32 v13, {PC_P}, v13
    v_sub_u32 v14, 255, v0                    ; J
    v_lshrrev_b32 v15, 3, v14
    v_lshl_add_u32 v14, v15, 1, v14
    v_lshlrev_b32 v14, 4, v14
    v_add_u32 v14, {UC_OFF+3*UC_COPY}, v14
    s_lshl_b32 s{T2}, s{S_DSK}, 16            ; D[ch0]
    s_and_b32 s{T3}, s{S_DSK}, 0xffff0000     ; D[ch1]
    s_lshl_b32 s{T5}, s2, 13
    s_add_u32 s{T5}, s{T5}, {WS_HT}
    s_add_u32 s{T6}, s{T5}, 4096
    s_waitcnt lgkmcnt(0)
    s_barrier
    """)
    for ch in range(2):
        b=16+32*ch
        for hf in range(2):
            for k in range(2):
                a(f"ds_read_b128 v[{b+8*hf+4*k}:{b+8*hf+4*k+3}], v13 offset:{(2*ch+hf)*PC_PW+16*k}")
        a(f"ds_read_b128 v[{b+16}:{b+19}], v14 offset:{ch*UC_CH}")
    for ch in range(2):
        b=16+32*ch; xr=176+4*ch; sd=T2+ch
        a(f"s_waitcnt lgkmcnt({5 if ch==0 else 0})")
        for e in range(8):
            ue=7-e
            a(f"v_add_f32 v{b+e}, v{b+e}, v{b+8+e}")
            a(f"v_lshlrev_b32 v{b+20}, 16, v{xr+(e>>1)}" if e%2==0 else f"v_and_b32 v{b+20}, 0xffff0000, v{xr+(e>>1)}")
            a(f"v_lshlrev_b32 v{b+21}, 16, v{b+16+(ue>>1)}" if ue%2==0 else f"v_and_b32 v{b+21}, 0xffff0000, v{b+16+(ue>>1)}")
            a(f"v_add_f32 v{b+e}, v{b+e}, v{b+20}")
            a(f"v_fma_f32 v{b+e}, v{b+21}, s{sd}, v{b+e}")
        for j in range(4):
            a(f"v_cvt_pk_bf16_f32 v{b+24+j}, v{b+2*j}, v{b+2*j+1}")
        a(f"buffer_store_dwordx4 v[{b+24}:{b+27}], v9, s[{SRD_B}:{SRD_B+3}], s{T5+ch} offen sc1")

S_RB, S_FS = 73, 74
HT_LDS = 0
STAT_OFF = 114688
V_SG, V_SU, V_ONE = 192, 208, 224

def ids_D(a):
    a(f"""
    s_lshr_b32 s{T0}, s{S_XCD}, 1
    s_lshl_b32 s{T0}, s{T0}, 2
    s_add_u32 s{S_RB}, s{T0}, s{S_K7}          ; rb = 4*(x>>1) + k/7
    s_and_b32 s{T0}, s{S_XCD}, 1
    s_mul_i32 s{T0}, s{T0}, 7
    s_add_u32 s{S_FS}, s{T0}, s{S_KM7}         ; fs = 7*(x&1) + k%7
    """)

def stageW_gu(a,cfg):
    NS=40
    ids_D(a)
    srd(a, SRD_A, P_WG, D*F*2)
    srd(a, SRD_C, P_WU, D*F*2)
    a(f"""
    v_lshrrev_b32 v2, 2, v1
    v_mul_u32_u24 v2, 3584, v2
    v_and_b32 v3, 3, v1
    v_lshl_add_u32 v2, v3, 4, v2
    s_lshl_b32 s{T0}, s{S_FS}, 8
    s_lshl_b32 s{T1}, s{S_WAVE}, 6
    s_add_u32 s{T0}, s{T0}, s{T1}
    s_mul_i32 s{T1}, s{S_WAVE}, 40960
    v_lshrrev_b32 v3, 4, v1                    ; G
    v_and_b32 v4, 15, v1                       ; i16
    v_lshrrev_b32 v5, 1, v3
    v_lshlrev_b32 v5, 3, v5
    v_lshrrev_b32 v6, 2, v4
    v_add_u32 v5, v5, v6
    v_lshlrev_b32 v5, 6, v5                    ; row*64
    v_and_b32 v6, 1, v3
    v_lshl_add_u32 v5, v6, 5, v5
    v_and_b32 v6, 3, v4
    v_lshl_add_u32 v5, v6, 3, v5
    v_add_u32 v3, s{T1}, v5
    v_mov_b32 v{V_ONE}, s{S_ONES}
    v_mov_b32 v{V_ONE+1}, s{S_ONES}
    v_mov_b32 v{V_ONE+2}, s{S_ONES}
    v_mov_b32 v{V_ONE+3}, s{S_ONES}
    """)
    def dma(i):
        s_,mat=i>>1,i&1
        sd=SRD_A if mat==0 else SRD_C
        a(f"s_add_u32 s{T2}, s{T0}, {s_*57344}")
        a(f"s_add_u32 m0, s{T1}, {(i%NS)*1024}")
        a(f"buffer_load_dwordx4 v2, s[{sd}:{sd+3}], s{T2} offen lds")
    for i in range(NS): dma(i)
    issued=NS
    def smfma(i):
        s_,mat=i>>1,i&1
        dst=V_SG if mat==0 else V_SU
        c="0" if s_==0 else f"v[{dst}:{dst+15}]"
        a(f"v_mfma_f32_32x32x16_bf16 v[{dst}:{dst+15}], a[{4*i}:{4*i+3}], v[{V_ONE}:{V_ONE+3}], {c}")
    for i in range(56):
        a(f"s_waitcnt vmcnt({issued-1-i})")
        a(f"ds_read_b64_tr_b16 a[{4*i}:{4*i+1}], v3 offset:{(i%NS)*1024}")
        a(f"ds_read_b64_tr_b16 a[{4*i+2}:{4*i+3}], v3 offset:{(i%NS)*1024+256}")
        if i>=1:
            a("s_waitcnt lgkmcnt(2)")
            if issued<56:
                dma(issued); issued+=1
            smfma(i-1)
    a("s_waitcnt lgkmcnt(0)")
    smfma(55)

def phaseD_loads(a,cfg):
    srd(a, SRD_B, P_WS, WS_SIZE)
    a(f"""
    v_lshrrev_b32 v2, 4, v1
    v_lshlrev_b32 v3, 2, v2
    v_and_b32 v4, 15, v1
    v_xor_b32 v4, v4, v3
    v_lshlrev_b32 v4, 4, v4
    v_lshl_add_u32 v2, v2, 12, v4              ; voffset
    s_lshl_b32 s{T0}, s{S_RB}, 8
    s_lshl_b32 s{T1}, s{S_WAVE}, 14
    s_add_u32 s{T0}, s{T0}, s{T1}
    s_add_u32 s{T0}, s{T0}, {WS_HT}
    s_lshl_b32 s{T1}, s{S_WAVE}, 10
    """)
    for i in range(28):
        a(f"s_add_u32 s{T2}, s{T0}, {i*65536}")
        a(f"s_add_u32 m0, s{T1}, {i*4096}")
        a(f"buffer_load_dwordx4 v2, s[{SRD_B}:{SRD_B+3}], s{T2} offen sc1 lds")

def phaseD(a,cfg):
    ACC=[16,48]; RING=80; SRING=96; MR=112
    a(f"""
    v_lshrrev_b32 v10, 4, v1                   ; G
    v_and_b32 v11, 15, v1                      ; i16
    v_lshrrev_b32 v12, 2, v11                  ; r
    v_lshrrev_b32 v13, 1, v10
    v_lshl_add_u32 v13, v13, 3, v12            ; 8hh + r
    v_lshlrev_b32 v13, 8, v13
    v_and_b32 v14, 1, v10
    v_lshl_add_u32 v13, v14, 5, v13
    v_and_b32 v14, 3, v11
    v_lshl_add_u32 v13, v14, 3, v13
    """)
    for j in range(4):
        a(f"v_xor_b32 v14, {j}, v12")
        a(f"v_lshl_add_u32 v{2+j}, v14, 6, v13")
        a(f"v_add_u32 v{6+j}, 0x10000, v{2+j}")
    a(f"""
    v_xor_b32 v14, s{S_WAVE}, v12
    v_lshl_add_u32 v10, v14, 6, v13
    v_add_u32 v11, 0x10000, v10
    v_lshlrev_b32 v12, 4, v1
    s_lshl_b32 s{T0}, s{S_RB}, 2
    s_mul_i32 s{T0}, s{T0}, 112
    s_lshl_b32 s{T1}, s{S_FS}, 3
    s_add_u32 s{T0}, s{T0}, s{T1}
    s_lshl_b32 s{T1}, s{S_WAVE}, 1
    s_add_u32 s{T0}, s{T0}, s{T1}
    s_lshl_b32 s{T0}, s{T0}, 10
    s_add_u32 s{T0}, s{T0}, {WS_ACT}
    v_mov_b32 v120, 0
    v_mov_b32 v121, 0
    v_mov_b32 v122, 0
    v_mov_b32 v123, 0
    s_waitcnt vmcnt(0)
    s_barrier
    """)
    def rd(j,s_,ring,areg=None):
        r=ring+4*(s_%4)
        ad=(2+j if s_<16 else 6+j) if areg is None else (areg if s_<16 else areg+1)
        o=4096*(s_%16)
        return [f"ds_read_b64_tr_b16 v[{r}:{r+1}], v{ad} offset:{o}", f"ds_read_b64_tr_b16 v[{r+2}:{r+3}], v{ad} offset:{o+1024}"]
    def epi(j):
        g=ACC[j&1]; u=g+16; m=MR+2*j; r=m+1
        c=124; r2=125
        L_=[f"v_mul_f32 v{c}, 0xbfb8aa3b, v{r}", f"v_mul_f32 v{r2}, v{r}, v{r}"]
        T=[126,127,128,129]
        for v in range(16):
            t=T[v%4]
            L_+= [f"v_fma_f32 v{g+v}, -v{m}, v{V_SG+v}, v{g+v}",
                  f"v_fma_f32 v{u+v}, -v{m}, v{V_SU+v}, v{u+v}",
                  f"v_mul_f32 v{t}, v{c}, v{g+v}",
                  f"v_mul_f32 v{g+v}, v{g+v}, v{u+v}",
                  f"v_exp_f32 v{t}, v{t}",
                  f"v_mul_f32 v{g+v}, v{g+v}, v{r2}",
                  f"v_add_f32 v{t}, 1.0, v{t}",
                  f"v_rcp_f32 v{t}, v{t}",
                  None,
                  f"v_mul_f32 v{g+v}, v{g+v}, v{t}"]
            if v%2==1:
                o=132+4*((v>>3)&1)+((v>>1)&3)
                L_.append(f"v_cvt_pk_bf16_f32 v{o}, v{g+v-1}, v{g+v}")
            if v==7 or v==15:
                o=132+4*((v>>3)&1)
                L_.append(f"buffer_store_dwordx4 v[{o}:{o+3}], v12, s[{SRD_B}:{SRD_B+3}], s{T2} offen offset:{1024*(v>>3)} sc1")
        return [x for x in L_ if x]
    steps=[(j,s_) for j in range(4) for s_ in range(28)]
    PF=3
    for k in range(PF):
        j,s_=steps[k]
        for x in rd(j,s_,RING)+rd(0,s_,SRING,10): a(x)
    pend=[]
    for n,(j,s_) in enumerate(steps):
        if s_==0 and j>0:
            if j==1:
                a(f"""
                v_add_f32 v120, v120, v121
                v_add_f32 v122, v122, v123
                v_mov_b32 v121, v120
                v_mov_b32 v123, v122
                v_permlane32_swap_b32 v120, v121
                v_permlane32_swap_b32 v122, v123
                v_add_f32 v120, v120, v121
                v_add_f32 v122, v122, v123
                v_mul_f32 v120, 0x3b124925, v120
                v_mul_f32 v122, 0x3b124925, v122
                v_fma_f32 v122, -v120, v120, v122
                v_max_f32 v122, 0, v122
                v_add_f32 v122, 0x3727c5ac, v122
                v_rsq_f32 v121, v122
                v_and_b32 v122, 31, v1
                v_lshlrev_b32 v122, 3, v122
                v_add_u32 v123, {STAT_OFF}, v122
                s_lshl_b32 s{T1}, s{S_WAVE}, 8
                v_add_u32 v122, s{T1}, v123
                ds_write_b64 v122, v[120:121]
                s_waitcnt lgkmcnt(0)
                s_barrier
                ds_read_b64 v[{MR}:{MR+1}], v123
                ds_read_b64 v[{MR+2}:{MR+3}], v123 offset:256
                ds_read_b64 v[{MR+4}:{MR+5}], v123 offset:512
                ds_read_b64 v[{MR+6}:{MR+7}], v123 offset:768
                s_waitcnt lgkmcnt(0)
                """)
            a(f"s_add_u32 s{T2}, s{T0}, {(j-1)*112*1024}")
            pend=epi(j-1)
        nrd=0
        if n+PF<len(steps):
            jj,ss=steps[n+PF]
            for x in rd(jj,ss,RING): a(x)
            nrd+=2
            if jj==0:
                for x in rd(0,ss,SRING,10): a(x)
        newer=0
        for k in range(1,PF+1):
            if n+k<len(steps):
                newer+= 4 if steps[n+k][0]==0 else 2
        if not (j==1 and s_<0): a(f"s_waitcnt lgkmcnt({min(newer,15)})")
        g=ACC[j&1]; u=g+16; b=RING+4*(s_%4)
        cg="0" if s_==0 else f"v[{g}:{g+15}]"; cu="0" if s_==0 else f"v[{u}:{u+15}]"
        a(f"v_mfma_f32_32x32x16_bf16 v[{g}:{g+15}], a[{8*s_}:{8*s_+3}], v[{b}:{b+3}], {cg}")
        if j==0:
            sb=SRING+4*(s_%4)
            for q in range(4):
                a(f"v_dot2c_f32_bf16 v{120+(q&1)}, s{S_ONES}, v{sb+q}")
        elif s_>=1:
            for _ in range(3):
                if pend: a(pend.pop(0))
        a(f"v_mfma_f32_32x32x16_bf16 v[{u}:{u+15}], a[{8*s_+4}:{8*s_+7}], v[{b}:{b+3}], {cu}")
        if j==0:
            for q in range(4):
                a(f"v_dot2c_f32_bf16 v{122+(q&1)}, v{sb+q}, v{sb+q}")
        elif s_>=1:
            for _ in range(3):
                if pend: a(pend.pop(0))
        if s_==27:
            while pend: a(pend.pop(0))
    a(f"s_add_u32 s{T2}, s{T0}, {3*112*1024}")
    for x in epi(3): a(x)

S_RB2, S_NT = 75, 76
def ids_E(a):
    a(f"""
    s_lshl_b32 s{S_RB2}, s{S_XCD}, 2
    s_add_u32 s{S_RB2}, s{S_RB2}, s{S_K7}      ; rb2 = 4x + k/7
    s_mov_b32 s{S_NT}, s{S_KM7}
    """)

def stageW_d(a,cfg):
    NS=20
    srd(a, SRD_A, P_WD, F*D*2)
    a(f"""
    v_lshrrev_b32 v2, 3, v1                    ; row
    v_lshrrev_b32 v3, 1, v2
    v_and_b32 v3, 1, v3
    v_lshlrev_b32 v3, 2, v3
    v_and_b32 v4, 7, v1
    v_xor_b32 v4, v4, v3
    v_mul_u32_u24 v2, 896, v2
    v_lshl_add_u32 v2, v4, 4, v2
    s_mul_i32 s{T0}, s{S_WAVE}, {448*896}
    s_lshl_b32 s{T1}, s{S_NT}, 7
    s_add_u32 s{T0}, s{T0}, s{T1}
    s_mul_i32 s{T1}, s{S_WAVE}, 40960
    v_lshrrev_b32 v3, 4, v1                    ; G
    v_and_b32 v4, 15, v1                       ; i16
    v_lshrrev_b32 v5, 1, v3                    ; hh
    v_lshlrev_b32 v5, 2, v5
    v_lshrrev_b32 v6, 2, v4
    v_add_u32 v5, v5, v6                       ; 4hh + r
    v_lshlrev_b32 v5, 7, v5
    v_and_b32 v6, 1, v4
    v_lshl_add_u32 v5, v6, 3, v5               ; +(i16&1)*8
    v_and_b32 v6, 1, v3
    v_lshlrev_b32 v6, 1, v6                    ; 2(G&1)
    v_bfe_u32 v7, v4, 1, 1                     ; (i16&3)>>1
    v_add_u32 v6, v6, v7
    v_lshl_add_u32 v5, v6, 4, v5
    v_add_u32 v5, s{T1}, v5
    v_lshrrev_b32 v6, 3, v4
    v_lshl_add_u32 v3, v6, 6, v5
    v_xor_b32 v6, 1, v6
    v_lshl_add_u32 v4, v6, 6, v5               ; nt2=1
    """)
    def dma(t):
        for hf in range(2):
            a(f"s_add_u32 s{T2}, s{T0}, {(16*t+8*hf)*896}")
            a(f"s_add_u32 m0, s{T1}, {(t%NS)*2048+hf*1024}")
            a(f"buffer_load_dwordx4 v2, s[{SRD_A}:{SRD_A+3}], s{T2} offen lds")
    for t in range(NS): dma(t)
    issued=NS
    for t in range(28):
        a(f"s_waitcnt vmcnt({2*(issued-1-t)})")
        for nt2 in range(2):
            for rd in range(2):
                r=8*t+4*nt2+2*rd
                a(f"ds_read_b64_tr_b16 a[{r}:{r+1}], v{3+nt2} offset:{(t%NS)*2048+rd*1024}")
        if t>=1 and issued<28:
            a("s_waitcnt lgkmcnt(4)")
            dma(issued); issued+=1
    a("s_waitcnt lgkmcnt(0)")

def phaseE_pre(a,cfg):
    srd(a, SRD_B, P_WS, WS_SIZE)
    a(f"""
    v_and_b32 v5, 3, v0
    v_lshlrev_b32 v5, 16, v5
    v_lshrrev_b32 v6, 2, v0
    v_lshl_add_u32 v5, v6, 1, v5
    s_lshl_b32 s{T3}, s{S_NT}, 18
    s_lshl_b32 s{T4}, s{S_RB2}, 7
    s_add_u32 s{T3}, s{T3}, s{T4}
    s_add_u32 s{T3}, s{T3}, {WS_HT}
    """)
    for e in range(16):
        a(f"s_add_u32 s{T4}, s{T3}, {e*4096}")
        a(f"buffer_load_ushort v{224+e}, v5, s[{SRD_B}:{SRD_B+3}], s{T4} offen sc1")

def phaseE(a,cfg):
    NR=36; RING=80; ACC=16
    a(f"""
    v_lshlrev_b32 v2, 4, v1
    s_lshl_b32 s{T0}, s{S_RB2}, 1
    s_mul_i32 s{T0}, s{T0}, 112
    s_mul_i32 s{T1}, s{S_WAVE}, 28
    s_add_u32 s{T0}, s{T0}, s{T1}
    s_lshl_b32 s{T0}, s{T0}, 10
    s_add_u32 s{T0}, s{T0}, {WS_ACT}
    """)
    def ld(i):
        t,lt=i>>1,i&1
        r=RING+4*(i%NR)
        a(f"s_add_u32 s{T2}, s{T0}, {t*1024+lt*114688}")
        a(f"buffer_load_dwordx4 v[{r}:{r+3}], v2, s[{SRD_B}:{SRD_B+3}], s{T2} offen sc1")
    for i in range(NR): ld(i)
    issued=NR
    for t in range(28):
        a(f"s_waitcnt vmcnt({issued-(2*t+2)})")
        for lt in range(2):
            b=RING+4*((2*t+lt)%NR)
            for nt2 in range(2):
                d=ACC+16*(2*lt+nt2)
                c="0" if t==0 else f"v[{d}:{d+15}]"
                a(f"v_mfma_f32_32x32x16_bf16 v[{d}:{d+15}], a[{8*t+4*nt2}:{8*t+4*nt2+3}], v[{b}:{b+3}], {c}")
        while issued<56 and issued-NR<2*t+2:
            ld(issued); issued+=1
    a(f"""
    v_and_b32 v3, 31, v1
    v_mul_u32_u24 v3, 272, v3
    v_lshrrev_b32 v4, 5, v1
    v_lshl_add_u32 v3, v4, 4, v3
    s_mul_i32 s{T1}, s{S_WAVE}, 17408
    v_add_u32 v3, s{T1}, v3
    v_lshrrev_b32 v4, 2, v0
    v_mul_u32_u24 v4, 272, v4
    v_and_b32 v5, 3, v0
    v_lshl_add_u32 v4, v5, 6, v4
    """)
    for lt in range(2):
        for nt2 in range(2):
            d=ACC+16*(2*lt+nt2)
            for g in range(4):
                a(f"ds_write_b128 v3, v[{d+4*g}:{d+4*g+3}] offset:{lt*8704+nt2*128+g*32}")
    srd(a, SRD_A, P_OUT, L*D*2)
    a(f"""
    v_lshrrev_b32 v6, 2, v0
    v_mul_u32_u24 v6, 896, v6
    v_lshl_add_u32 v6, v5, 5, v6
    s_mul_i32 s{T1}, s{S_RB2}, {64*896}
    s_lshl_b32 s{T2}, s{S_NT}, 7
    s_add_u32 s{T1}, s{T1}, s{T2}
    s_waitcnt lgkmcnt(0)
    s_barrier
    """)
    for pw in range(4):
        for i in range(4):
            r=80+16*pw+4*i
            a(f"ds_read_b128 v[{r}:{r+3}], v4 offset:{pw*17408+16*i}")
        if pw==2: a("s_waitcnt lgkmcnt(4)")
    a("s_waitcnt lgkmcnt(0)")
    for e in range(16):
        a(f"v_lshlrev_b32 v{224+e}, 16, v{224+e}")
        a(f"v_add_f32 v{80+e}, v{80+e}, v{96+e}")
        a(f"v_add_f32 v{112+e}, v{112+e}, v{128+e}")
        a(f"v_add_f32 v{80+e}, v{80+e}, v{224+e}")
        a(f"v_add_f32 v{80+e}, v{80+e}, v{112+e}")
    for j in range(8):
        a(f"v_cvt_pk_bf16_f32 v{16+j}, v{80+2*j}, v{81+2*j}")
    a(f"buffer_store_dwordx4 v[16:19], v6, s[{SRD_A}:{SRD_A+3}], s{T1} offen")
    a(f"buffer_store_dwordx4 v[20:23], v6, s[{SRD_A}:{SRD_A+3}], s{T1} offen offset:16")

def rest(a,cfg):
    stop=cfg.get('stop','')
    if stop=='A': return
    signal(a,'s1',dbg_off=0)
    phaseB(a,cfg)
    if stop=='K':
        dumpK(a); a("s_branch L_end"); return
    wait(a,'s1',0,1,NWG)
    phaseC_loads(a,cfg)
    phaseC(a,cfg)
    if stop=='C':
        a("s_waitcnt vmcnt(0)"); a("s_branch L_end"); return
    signal(a,'s2',dbg_off=128)
    stageW_gu(a,cfg)
    wait(a,'s2',128,1,NWG)
    phaseD_loads(a,cfg)
    phaseD(a,cfg)
    if stop=='D':
        a("s_waitcnt vmcnt(0)"); a("s_branch L_end"); return
    a(f"s_lshl_b32 s{T3}, s{S_RB}, 2")
    a(f"s_add_u32 s{T3}, s{T3}, 160")
    signal(a,'s3',dbg_off_sgpr=T3)
    ids_E(a)
    stageW_d(a,cfg)
    phaseE_pre(a,cfg)
    a(f"s_lshr_b32 s{T3}, s{S_RB2}, 1")
    a(f"s_lshl_b32 s{T3}, s{T3}, 2")
    wait(a,'s3',160,1,14,off_sgpr=T3)
    phaseE(a,cfg)
```

```python
import sys, os
sys.path.insert(0, os.path.dirname(os.path.abspath(__file__)))
from asmlib import Asm
import numpy as np

KNAME = "sequential_preLN__ssm_conv_s4d__swiglu_ffn__prompt_kernel"
L, D, F, N = 2048, 448, 1792, 256
NWG = 224
WS_UREV = 0x000000
WS_XT   = 0x200000
WS_HT   = 0x400000
WS_ACT  = 0x600000
WS_DBG  = 0x1000000
WS_SIZE = 0x2000000
KC_OFF   = 0
KC_CH    = 8448
KC_COPY  = 4224
TP_OFF   = 16896
TF_OFF   = 29184
TF_CH    = 1552
UC_OFF   = 32320
UC_CH    = 24832
UC_COPY  = 6208
KG_OFF   = 81984
KG_WAVE  = 16896
KG_ROW   = 528
PA_U     = UC_OFF
PA_X     = UC_OFF + 10240
PA_ROW   = 160
PC_P     = KG_OFF
PC_PW    = 9216
LDS_TOTAL = 163840

S_KARG=0
S_WG=2
SRD_A, SRD_B, SRD_C, SRD_D = 4, 8, 12, 16
P_X, P_LA, P_AI, P_CR, P_CI, P_LDT, P_DS, P_BX = 36,38,40,42,44,46,48,50
P_WG, P_WU, P_WD, P_OUT, P_DBG, P_WS = 52,54,56,58,60,62
S_WAVE, S_XCD, S_K, S_K7, S_KM7 = 64,65,66,67,68
S_LDT, S_DSK = 69, 70
S_ONES = 71
S_POLL = 72
T0,T1,T2,T3,T4,T5,T6,T7 = 20,21,22,23,24,25,26,27

def srd(a, s, ptr, size, add=None):
    if add is None:
        a(f"s_mov_b32 s{s}, s{ptr}")
        a(f"s_and_b32 s{s+1}, s{ptr+1}, 0xffff")
    else:
        a(f"s_add_u32 s{s}, s{ptr}, {add}")
        a(f"s_addc_u32 s{s+1}, s{ptr+1}, 0")
        a(f"s_and_b32 s{s+1}, s{s+1}, 0xffff")
    a(f"s_mov_b32 s{s+2}, {size}")
    a(f"s_mov_b32 s{s+3}, 0x20000")

HI = [0,1,2,3,4,5,6,7,256,258,260,262,512,516,768,772,1024,1280,1536,1792,2048]
def bf16_pos(l):
    x=np.float32(l).view(np.uint32)
    r=((int(x)+0x7FFF+((int(x)>>16)&1))>>16)<<16
    return int(np.uint32(r).view(np.float32))
def tab_index(l):
    if l<0: return 768
    p=bf16_pos(l)
    if p==2048: return 20*32
    lo=(p&255)>>3
    return HI.index(p-8*lo)*32+lo

def prologue(a, cfg):
    a(f"""
    s_cmp_ge_u32 s2, {NWG}
    s_cbranch_scc1 L_end
    s_load_dwordx16 s[36:51], s[0:1], 0
    s_load_dwordx8 s[52:59], s[0:1], 64
    s_load_dwordx4 s[60:63], s[0:1], 96
    v_and_b32 v1, 63, v0
    v_lshrrev_b32 v2, 6, v0
    s_and_b32 s{S_XCD}, s2, 7
    s_lshr_b32 s{S_K}, s2, 3
    v_readfirstlane_b32 s{S_WAVE}, v2
    s_mul_i32 s{S_K7}, s{S_K}, 37
    s_lshr_b32 s{S_K7}, s{S_K7}, 8
    s_mul_i32 s{T0}, s{S_K7}, 7
    s_sub_u32 s{S_KM7}, s{S_K}, s{T0}
    s_mov_b32 s{S_ONES}, 0x3f803f80
    s_waitcnt lgkmcnt(0)
    """)

VA_X=2
VB_PAR=66
VB_IDX=70
def phaseA_loads(a):
    a(f"""
    s_lshl_b32 s{T0}, s{S_XCD}, 2
    s_add_u32 s{T0}, s{T0}, s{S_K7}          ; rbA
    s_mul_i32 s{T1}, s{T0}, 57344
    s_lshl_b32 s{T2}, s{S_KM7}, 7
    s_add_u32 s{T2}, s{T2}, s{T1}            ; + slice
    """)
    srd(a, SRD_A, P_X, 1835008)
    a(f"""
    v_and_b32 v80, 7, v0
    v_lshrrev_b32 v81, 3, v0
    v_mul_u32_u24 v82, 896, v81
    v_lshl_add_u32 v82, v80, 4, v82
    v_add_u32 v83, 28672, v82
    """)
    for p in range(2):
        for i in range(7):
            r=VA_X+28*p+4*i
            a(f"buffer_load_dwordx4 v[{r}:{r+3}], v{82+p}, s[{SRD_A}:{SRD_A+3}], s{T1} offen offset:{128*i}")
    a(f"buffer_load_dwordx4 v[58:61], v82, s[{SRD_A}:{SRD_A+3}], s{T2} offen")
    a(f"buffer_load_dwordx4 v[62:65], v83, s[{SRD_A}:{SRD_A+3}], s{T2} offen")

def phaseB_loads(a):
    a(f"""
    s_lshr_b32 s{T3}, s{S_WAVE}, 1
    s_lshl_b32 s{T4}, s2, 1
    s_add_u32 s{T4}, s{T4}, s{T3}            ; d
    s_lshl_b32 s{T4}, s{T4}, 9
    s_and_b32 s{T5}, s{S_WAVE}, 1
    s_lshl_b32 s{T5}, s{T5}, 8
    s_add_u32 s{T4}, s{T4}, s{T5}
    v_lshl_add_u32 v84, v1, 2, s{T4}
    s_lshl_b32 s{T5}, s2, 2
    s_load_dword s{S_LDT}, s[{P_LDT}:{P_LDT+1}], s{T5}
    s_load_dword s{S_DSK}, s[{P_DS}:{P_DS+1}], s{T5}
    global_load_dword v66, v84, s[{P_LA}:{P_LA+1}]
    global_load_dword v67, v84, s[{P_AI}:{P_AI+1}]
    global_load_dword v68, v84, s[{P_CR}:{P_CR+1}]
    global_load_dword v69, v84, s[{P_CI}:{P_CI+1}]
    s_getpc_b64 s[{T6}:{T7}]
L_pc0:
    s_add_u32 s{T6}, s{T6}, L_idxtab-L_pc0
    s_addc_u32 s{T7}, s{T7}, 0
    v_lshlrev_b32 v85, 5, v0
    global_load_dwordx4 v[70:73], v85, s[{T6}:{T7}]
    global_load_dword v74, v85, s[{T6}:{T7}] offset:16
    """)

def phaseA(a, cfg):
    nb=6
    a(f"""
    v_lshrrev_b32 v86, 3, v0
    v_mul_u32_u24 v86, {KC_COPY}, v86
    v_and_b32 v87, 7, v0
    v_lshl_add_u32 v86, v87, 4, v86
    v_mov_b32 v88, 0
    v_mov_b32 v89, 0
    v_mov_b32 v90, 0
    v_mov_b32 v91, 0
    v_cmp_gt_u32 vcc, 32, v0
    s_and_saveexec_b64 s[28:29], vcc
    s_cbranch_execz L_nozero
    ds_write_b128 v86, v[88:91] offset:{KC_OFF}
L_nozero:
    s_mov_b64 exec, s[28:29]
    """)
    for p in range(2):
        a(f"s_waitcnt vmcnt({nb+2+(7 if p==0 else 0)})")
        s1a,s1b,s2a,s2b = 92+4*p,93+4*p,94+4*p,95+4*p
        a(f"v_mov_b32 v{s1a}, 0\nv_mov_b32 v{s1b}, 0\nv_mov_b32 v{s2a}, 0\nv_mov_b32 v{s2b}, 0")
        for j in range(28):
            r=VA_X+28*p+j
            a(f"v_dot2c_f32_bf16 v{s1a if j%2==0 else s1b}, s{S_ONES}, v{r}")
            a(f"v_dot2c_f32_bf16 v{s2a if j%2==0 else s2b}, v{r}, v{r}")
        a(f"v_add_f32 v{s1a}, v{s1a}, v{s1b}\nv_add_f32 v{s2a}, v{s2a}, v{s2b}")
    for p in range(2):
        s1,s2=92+4*p,94+4*p
        for m in ("quad_perm:[1,0,3,2]","quad_perm:[2,3,0,1]","row_half_mirror"):
            a(f"v_add_f32_dpp v{s1}, v{s1}, v{s1} {m} row_mask:0xf bank_mask:0xf")
            a(f"v_add_f32_dpp v{s2}, v{s2}, v{s2} {m} row_mask:0xf bank_mask:0xf")
    a(f"s_mov_b32 s{T3}, 0x3b124925   ; 1/448")
    a(f"s_mov_b32 s{T4}, 0x3727c5ac   ; 1e-5")
    for p in range(2):
        s1,s2=92+4*p,94+4*p
        a(f"""
        v_mul_f32 v{s1}, s{T3}, v{s1}
        v_mul_f32 v{s2}, s{T3}, v{s2}
        v_fma_f32 v{s2}, -v{s1}, v{s1}, v{s2}
        v_max_f32 v{s2}, 0, v{s2}
        v_add_f32 v{s2}, s{T4}, v{s2}
        v_rsq_f32 v{s2}, v{s2}
        v_mul_f32 v{s1}, v{s1}, v{s2}
        """)
    a(f"s_waitcnt vmcnt({nb})")
    for p in range(2):
        s1,s2=92+4*p,94+4*p
        src=58+4*p; dst=100+4*p
        for j in range(4):
            a(f"""
            v_lshlrev_b32 v108, 16, v{src+j}
            v_and_b32 v109, 0xffff0000, v{src+j}
            v_fma_f32 v108, v108, v{s2}, -v{s1}
            v_fma_f32 v109, v109, v{s2}, -v{s1}
            v_cvt_pk_bf16_f32 v{dst+j}, v108, v109
            """)
    a(f"""
    v_mul_u32_u24 v110, {PA_ROW}, v81
    v_lshl_add_u32 v110, v80, 4, v110          ; X addr (p=0)
    v_sub_u32 v111, 63, v81
    v_mul_u32_u24 v111, {PA_ROW}, v111
    v_lshl_add_u32 v111, v80, 4, v111
    v_subrev_u32 v112, {32*PA_ROW}, v111
    ds_write_b128 v110, v[58:61] offset:{PA_X}
    ds_write_b128 v110, v[62:65] offset:{PA_X+32*PA_ROW}
    ds_write_b128 v111, v[100:103] offset:{PA_U}
    ds_write_b128 v112, v[104:107] offset:{PA_U}
    s_waitcnt lgkmcnt(0)
    s_barrier
    """)
    a(f"""
    v_lshrrev_b32 v113, 4, v1                  ; g
    v_and_b32 v114, 15, v1                     ; i
    v_lshrrev_b32 v115, 2, v114
    v_lshl_add_u32 v115, v113, 3, v115         ; row = 8g + (i>>2)
    v_mul_u32_u24 v115, {PA_ROW}, v115
    v_and_b32 v116, 3, v114
    v_lshl_add_u32 v115, v116, 3, v115
    s_lshl_b32 s{T3}, s{S_WAVE}, 5
    v_add_u32 v115, s{T3}, v115
    """)
    for t,(base) in enumerate((PA_U,PA_X)):
        for pr in range(2):
            r=120+8*t+4*pr
            a(f"ds_read_b64_tr_b16 v[{r}:{r+1}], v115 offset:{base+pr*32*PA_ROW}")
            a(f"ds_read_b64_tr_b16 v[{r+2}:{r+3}], v115 offset:{base+pr*32*PA_ROW+4*PA_ROW}")
    srd(a, SRD_B, P_WS, WS_SIZE)
    a(f"""
    s_lshl_b32 s{T3}, s{S_WAVE}, 4
    v_add_u32 v117, s{T3}, v114
    v_lshlrev_b32 v117, 12, v117
    v_lshl_add_u32 v117, v113, 4, v117          ; (16w+i)*4096 + g*16
    s_lshl_b32 s{T3}, s{S_KM7}, 18              ; cs*64*4096
    s_lshl_b32 s{T4}, s{T0}, 7                  ; rb*128
    s_sub_u32 s{T5}, s{T3}, s{T4}
    s_add_u32 s{T5}, s{T5}, {WS_UREV+3968}
    s_add_u32 s{T6}, s{T3}, s{T4}
    s_add_u32 s{T6}, s{T6}, {WS_XT}
    s_waitcnt lgkmcnt(0)
    buffer_store_dwordx4 v[120:123], v117, s[{SRD_B}:{SRD_B+3}], s{T5} offen sc1
    buffer_store_dwordx4 v[124:127], v117, s[{SRD_B}:{SRD_B+3}], s{T5} offen offset:64 sc1
    buffer_store_dwordx4 v[128:131], v117, s[{SRD_B}:{SRD_B+3}], s{T6} offen sc1
    buffer_store_dwordx4 v[132:135], v117, s[{SRD_B}:{SRD_B+3}], s{T6} offen offset:64 sc1
    """)

def signal(a, name, dbg_off_sgpr=None, dbg_off=0):
    a("s_waitcnt vmcnt(0)")
    a("s_barrier")
    a(f"s_cmp_eq_u32 s{S_WAVE}, 0")
    a(f"s_cbranch_scc0 L_sig_{name}")
    a("s_mov_b64 exec, 1")
    if dbg_off_sgpr is not None: a(f"v_mov_b32 v250, s{dbg_off_sgpr}")
    else: a(f"v_mov_b32 v250, {dbg_off}")
    a("v_mov_b32 v251, 1")
    a(f"global_atomic_add v250, v251, s[{P_DBG}:{P_DBG+1}]")
    a("s_mov_b64 exec, -1")
    a(f"L_sig_{name}:")

def wait(a, name, first_off, ncnt, expect, off_sgpr=None):
    a(f"s_cmp_eq_u32 s{S_WAVE}, 0")
    a(f"s_cbranch_scc0 L_wait_{name}_done")
    a(f"v_min_u32 v250, {ncnt-1}, v1")
    a(f"v_lshlrev_b32 v250, 2, v250")
    if off_sgpr is not None: a(f"v_add_u32 v250, s{off_sgpr}, v250")
    a(f"s_mov_b32 s{S_POLL}, 0")
    a(f"L_wait_{name}:")
    a(f"global_load_dword v251, v250, s[{P_DBG}:{P_DBG+1}] offset:{first_off} sc1")
    a(f"s_add_u32 s{S_POLL}, s{S_POLL}, 1")
    a("s_waitcnt vmcnt(0)")
    a(f"v_cmp_ne_u32 vcc, {expect}, v251")
    a(f"s_cmp_gt_u32 s{S_POLL}, 400000")
    a(f"s_cbranch_scc1 L_wait_{name}_done")
    a(f"s_cbranch_vccnz L_wait_{name}")
    a(f"L_wait_{name}_done:")
    a("s_barrier")

def build(cfg):
    a=Asm()
    prologue(a,cfg)
    phaseA_loads(a)
    phaseB_loads(a)
    phaseA(a,cfg)
    stop=cfg.get('stop','')
    if stop=='A':
        a("s_waitcnt vmcnt(0)")
        a("s_branch L_end")
    import phases2
    phases2.rest(a,cfg)
    a("L_end:")
    a("s_endpgm")
    body=a.finalize()
    tab=[]
    for t in range(256):
        row=[2*tab_index(8*t-1+i) for i in range(9)]+[0]*7
        tab.append(".short "+", ".join(str(x) for x in row))
    hdr=open(os.path.join(os.path.dirname(os.path.abspath(__file__)),"header.txt")).read()
    txt=hdr.replace("@LAUNCH@", f"; @launch grid=({cfg.get('grid',NWG)},1,1) block=(256,1,1) lds={LDS_TOTAL}")
    txt+=f""".amdgcn_target "amdgcn-amd-amdhsa--gfx950"
.text
.globl {KNAME}
.p2align 8
.type {KNAME},@function
{KNAME}:
{body}.p2align 6
L_idxtab:
""" + "\n".join(tab) + f"""
.section .rodata,"a"
.p2align 6
.amdhsa_kernel {KNAME}
  .amdhsa_next_free_vgpr 512
  .amdhsa_next_free_sgpr 96
  .amdhsa_accum_offset 256
  .amdhsa_group_segment_fixed_size 0
  .amdhsa_kernarg_size 112
  .amdhsa_user_sgpr_count 2
  .amdhsa_user_sgpr_kernarg_segment_ptr 1
  .amdhsa_system_sgpr_workgroup_id_x 1
.end_amdhsa_kernel
"""
    return txt, a

if __name__=="__main__":
    cfg={}
    out=sys.argv[1]
    for kv in sys.argv[2:]:
        k,v=kv.split('='); cfg[k]=int(v) if v.isdigit() else v
    txt,a=build(cfg)
    open(out,"w").write(txt)
    print(f"wrote {out}: {a.ninstr} instrs, {a.nnops} auto nops, {len(txt)} bytes")
```

```python
import sys, os
sys.path.insert(0, os.path.dirname(os.path.abspath(__file__)))
from asmlib import Asm
import numpy as np

KNAME = "sequential_preLN__ssm_conv_s4d__swiglu_ffn__prompt_kernel"
L, D, F, N = 2048, 448, 1792, 256
NWG = 224
WS_UREV = 0x000000
WS_XT   = 0x200000
WS_HT   = 0x400000
WS_ACT  = 0x600000
WS_DBG  = 0x1000000
WS_SIZE = 0x2000000
KC_OFF   = 0
KC_CH    = 8448
KC_COPY  = 4224
TP_OFF   = 16896
TF_OFF   = 29184
TF_CH    = 1552
UC_OFF   = 32320
UC_CH    = 24832
UC_COPY  = 6208
KG_OFF   = 81984
KG_WAVE  = 16896
KG_ROW   = 528
PA_U     = UC_OFF
PA_X     = UC_OFF + 10240
PA_ROW   = 160
PC_P     = KG_OFF
PC_PW    = 9216
LDS_TOTAL = 163840

S_KARG=0
S_WG=2
SRD_A, SRD_B, SRD_C, SRD_D = 4, 8, 12, 16
P_X, P_LA, P_AI, P_CR, P_CI, P_LDT, P_DS, P_BX = 36,38,40,42,44,46,48,50
P_WG, P_WU, P_WD, P_OUT, P_DBG, P_WS = 52,54,56,58,60,62
S_WAVE, S_XCD, S_K, S_K7, S_KM7 = 64,65,66,67,68
S_LDT, S_DSK = 69, 70
S_ONES = 71
S_POLL = 72
T0,T1,T2,T3,T4,T5,T6,T7 = 20,21,22,23,24,25,26,27

def srd(a, s, ptr, size, add=None):
    if add is None:
        a(f"s_mov_b32 s{s}, s{ptr}")
        a(f"s_and_b32 s{s+1}, s{ptr+1}, 0xffff")
    else:
        a(f"s_add_u32 s{s}, s{ptr}, {add}")
        a(f"s_addc_u32 s{s+1}, s{ptr+1}, 0")
        a(f"s_and_b32 s{s+1}, s{s+1}, 0xffff")
    a(f"s_mov_b32 s{s+2}, {size}")
    a(f"s_mov_b32 s{s+3}, 0x20000")

HI = [0,1,2,3,4,5,6,7,256,258,260,262,512,516,768,772,1024,1280,1536,1792,2048]
def bf16_pos(l):
    x=np.float32(l).view(np.uint32)
    r=((int(x)+0x7FFF+((int(x)>>16)&1))>>16)<<16
    return int(np.uint32(r).view(np.float32))
def tab_index(l):
    if l<0: return 768
    p=bf16_pos(l)
    if p==2048: return 20*32
    lo=(p&255)>>3
    return HI.index(p-8*lo)*32+lo

def prologue(a, cfg):
    a(f"""
    s_cmp_ge_u32 s2, {NWG}
    s_cbranch_scc1 L_end
    s_load_dwordx16 s[36:51], s[0:1], 0
    s_load_dwordx8 s[52:59], s[0:1], 64
    s_load_dwordx4 s[60:63], s[0:1], 96
    v_and_b32 v1, 63, v0
    v_lshrrev_b32 v2, 6, v0
    s_and_b32 s{S_XCD}, s2, 7
    s_lshr_b32 s{S_K}, s2, 3
    v_readfirstlane_b32 s{S_WAVE}, v2
    s_mul_i32 s{S_K7}, s{S_K}, 37
    s_lshr_b32 s{S_K7}, s{S_K7}, 8
    s_mul_i32 s{T0}, s{S_K7}, 7
    s_sub_u32 s{S_KM7}, s{S_K}, s{T0}
    s_mov_b32 s{S_ONES}, 0x3f803f80
    s_waitcnt lgkmcnt(0)
    """)

VA_X=2
VB_PAR=66
VB_IDX=70
def phaseA_loads(a):
    a(f"""
    s_lshl_b32 s{T0}, s{S_XCD}, 2
    s_add_u32 s{T0}, s{T0}, s{S_K7}          ; rbA
    s_mul_i32 s{T1}, s{T0}, 57344
    s_lshl_b32 s{T2}, s{S_KM7}, 7
    s_add_u32 s{T2}, s{T2}, s{T1}            ; + slice
    """)
    srd(a, SRD_A, P_X, 1835008)
    a(f"""
    v_and_b32 v80, 7, v0
    v_lshrrev_b32 v81, 3, v0
    v_mul_u32_u24 v82, 896, v81
    v_lshl_add_u32 v82, v80, 4, v82
    v_add_u32 v83, 28672, v82
    """)
    for p in range(2):
        for i in range(7):
            r=VA_X+28*p+4*i
            a(f"buffer_load_dwordx4 v[{r}:{r+3}], v{82+p}, s[{SRD_A}:{SRD_A+3}], s{T1} offen offset:{128*i}")
    a(f"buffer_load_dwordx4 v[58:61], v82, s[{SRD_A}:{SRD_A+3}], s{T2} offen")
    a(f"buffer_load_dwordx4 v[62:65], v83, s[{SRD_A}:{SRD_A+3}], s{T2} offen")

def phaseB_loads(a):
    a(f"""
    s_lshr_b32 s{T3}, s{S_WAVE}, 1
    s_lshl_b32 s{T4}, s2, 1
    s_add_u32 s{T4}, s{T4}, s{T3}            ; d
    s_lshl_b32 s{T4}, s{T4}, 9
    s_and_b32 s{T5}, s{S_WAVE}, 1
    s_lshl_b32 s{T5}, s{T5}, 8
    s_add_u32 s{T4}, s{T4}, s{T5}
    v_lshl_add_u32 v84, v1, 2, s{T4}
    s_lshl_b32 s{T5}, s2, 2
    s_load_dword s{S_LDT}, s[{P_LDT}:{P_LDT+1}], s{T5}
    s_load_dword s{S_DSK}, s[{P_DS}:{P_DS+1}], s{T5}
    global_load_dword v66, v84, s[{P_LA}:{P_LA+1}]
    global_load_dword v67, v84, s[{P_AI}:{P_AI+1}]
    global_load_dword v68, v84, s[{P_CR}:{P_CR+1}]
    global_load_dword v69, v84, s[{P_CI}:{P_CI+1}]
    s_getpc_b64 s[{T6}:{T7}]
L_pc0:
    s_add_u32 s{T6}, s{T6}, L_idxtab-L_pc0
    s_addc_u32 s{T7}, s{T7}, 0
    v_lshlrev_b32 v85, 5, v0
    global_load_dwordx4 v[70:73], v85, s[{T6}:{T7}]
    global_load_dword v74, v85, s[{T6}:{T7}] offset:16
    """)

def phaseA(a, cfg):
    nb=6
    a(f"""
    v_lshrrev_b32 v86, 3, v0
    v_mul_u32_u24 v86, {KC_COPY}, v86
    v_and_b32 v87, 7, v0
    v_lshl_add_u32 v86, v87, 4, v86
    v_mov_b32 v88, 0
    v_mov_b32 v89, 0
    v_mov_b32 v90, 0
    v_mov_b32 v91, 0
    v_cmp_gt_u32 vcc, 32, v0
    s_and_saveexec_b64 s[28:29], vcc
    s_cbranch_execz L_nozero
    ds_write_b128 v86, v[88:91] offset:{KC_OFF}
L_nozero:
    s_mov_b64 exec, s[28:29]
    """)
    for p in range(2):
        a(f"s_waitcnt vmcnt({nb+2+(7 if p==0 else 0)})")
        s1a,s1b,s2a,s2b = 92+4*p,93+4*p,94+4*p,95+4*p
        a(f"v_mov_b32 v{s1a}, 0\nv_mov_b32 v{s1b}, 0\nv_mov_b32 v{s2a}, 0\nv_mov_b32 v{s2b}, 0")
        for j in range(28):
            r=VA_X+28*p+j
            a(f"v_dot2c_f32_bf16 v{s1a if j%2==0 else s1b}, s{S_ONES}, v{r}")
            a(f"v_dot2c_f32_bf16 v{s2a if j%2==0 else s2b}, v{r}, v{r}")
        a(f"v_add_f32 v{s1a}, v{s1a}, v{s1b}\nv_add_f32 v{s2a}, v{s2a}, v{s2b}")
    for p in range(2):
        s1,s2=92+4*p,94+4*p
        for m in ("quad_perm:[1,0,3,2]","quad_perm:[2,3,0,1]","row_half_mirror"):
            a(f"v_add_f32_dpp v{s1}, v{s1}, v{s1} {m} row_mask:0xf bank_mask:0xf")
            a(f"v_add_f32_dpp v{s2}, v{s2}, v{s2} {m} row_mask:0xf bank_mask:0xf")
    a(f"s_mov_b32 s{T3}, 0x3b124925   ; 1/448")
    a(f"s_mov_b32 s{T4}, 0x3727c5ac   ; 1e-5")
    for p in range(2):
        s1,s2=92+4*p,94+4*p
        a(f"""
        v_mul_f32 v{s1}, s{T3}, v{s1}
        v_mul_f32 v{s2}, s{T3}, v{s2}
        v_fma_f32 v{s2}, -v{s1}, v{s1}, v{s2}
        v_max_f32 v{s2}, 0, v{s2}
        v_add_f32 v{s2}, s{T4}, v{s2}
        v_rsq_f32 v{s2}, v{s2}
        v_mul_f32 v{s1}, v{s1}, v{s2}
        """)
    a(f"s_waitcnt vmcnt({nb})")
    for p in range(2):
        s1,s2=92+4*p,94+4*p
        src=58+4*p; dst=100+4*p
        for j in range(4):
            a(f"""
            v_lshlrev_b32 v108, 16, v{src+j}
            v_and_b32 v109, 0xffff0000, v{src+j}
            v_fma_f32 v108, v108, v{s2}, -v{s1}
            v_fma_f32 v109, v109, v{s2}, -v{s1}
            v_cvt_pk_bf16_f32 v{dst+j}, v108, v109
            """)
    a(f"""
    v_mul_u32_u24 v110, {PA_ROW}, v81
    v_lshl_add_u32 v110, v80, 4, v110          ; X addr (p=0)
    v_sub_u32 v111, 63, v81
    v_mul_u32_u24 v111, {PA_ROW}, v111
    v_lshl_add_u32 v111, v80, 4, v111
    v_subrev_u32 v112, {32*PA_ROW}, v111
    ds_write_b128 v110, v[58:61] offset:{PA_X}
    ds_write_b128 v110, v[62:65] offset:{PA_X+32*PA_ROW}
    ds_write_b128 v111, v[100:103] offset:{PA_U}
    ds_write_b128 v112, v[104:107] offset:{PA_U}
    s_waitcnt lgkmcnt(0)
    s_barrier
    """)
    a(f"""
    v_lshrrev_b32 v113, 4, v1                  ; g
    v_and_b32 v114, 15, v1                     ; i
    v_lshrrev_b32 v115, 2, v114
    v_lshl_add_u32 v115, v113, 3, v115         ; row = 8g + (i>>2)
    v_mul_u32_u24 v115, {PA_ROW}, v115
    v_and_b32 v116, 3, v114
    v_lshl_add_u32 v115, v116, 3, v115
    s_lshl_b32 s{T3}, s{S_WAVE}, 5
    v_add_u32 v115, s{T3}, v115
    """)
    for t,(base) in enumerate((PA_U,PA_X)):
        for pr in range(2):
            r=120+8*t+4*pr
            a(f"ds_read_b64_tr_b16 v[{r}:{r+1}], v115 offset:{base+pr*32*PA_ROW}")
            a(f"ds_read_b64_tr_b16 v[{r+2}:{r+3}], v115 offset:{base+pr*32*PA_ROW+4*PA_ROW}")
    srd(a, SRD_B, P_WS, WS_SIZE)
    a(f"""
    s_lshl_b32 s{T3}, s{S_WAVE}, 4
    v_add_u32 v117, s{T3}, v114
    v_lshlrev_b32 v117, 12, v117
    v_lshl_add_u32 v117, v113, 4, v117          ; (16w+i)*4096 + g*16
    s_lshl_b32 s{T3}, s{S_KM7}, 18              ; cs*64*4096
    s_lshl_b32 s{T4}, s{T0}, 7                  ; rb*128
    s_sub_u32 s{T5}, s{T3}, s{T4}
    s_add_u32 s{T5}, s{T5}, {WS_UREV+3968}
    s_add_u32 s{T6}, s{T3}, s{T4}
    s_add_u32 s{T6}, s{T6}, {WS_XT}
    s_waitcnt lgkmcnt(0)
    buffer_store_dwordx4 v[120:123], v117, s[{SRD_B}:{SRD_B+3}], s{T5} offen sc1
    buffer_store_dwordx4 v[124:127], v117, s[{SRD_B}:{SRD_B+3}], s{T5} offen offset:64 sc1
    buffer_store_dwordx4 v[128:131], v117, s[{SRD_B}:{SRD_B+3}], s{T6} offen sc1
    buffer_store_dwordx4 v[132:135], v117, s[{SRD_B}:{SRD_B+3}], s{T6} offen offset:64 sc1
    """)

def signal(a, name, dbg_off_sgpr=None, dbg_off=0):
    a("s_waitcnt vmcnt(0)")
    a("s_barrier")
    a(f"s_cmp_eq_u32 s{S_WAVE}, 0")
    a(f"s_cbranch_scc0 L_sig_{name}")
    a("s_mov_b64 exec, 1")
    if dbg_off_sgpr is not None: a(f"v_mov_b32 v250, s{dbg_off_sgpr}")
    else: a(f"v_mov_b32 v250, {dbg_off}")
    a("v_mov_b32 v251, 1")
    a(f"global_atomic_add v250, v251, s[{P_DBG}:{P_DBG+1}]")
    a("s_mov_b64 exec, -1")
    a(f"L_sig_{name}:")

def wait(a, name, first_off, ncnt, expect, off_sgpr=None):
    a(f"s_cmp_eq_u32 s{S_WAVE}, 0")
    a(f"s_cbranch_scc0 L_wait_{name}_done")
    a(f"v_min_u32 v250, {ncnt-1}, v1")
    a(f"v_lshlrev_b32 v250, 2, v250")
    if off_sgpr is not None: a(f"v_add_u32 v250, s{off_sgpr}, v250")
    a(f"s_mov_b32 s{S_POLL}, 0")
    a(f"L_wait_{name}:")
    a(f"global_load_dword v251, v250, s[{P_DBG}:{P_DBG+1}] offset:{first_off} sc1")
    a(f"s_add_u32 s{S_POLL}, s{S_POLL}, 1")
    a("s_waitcnt vmcnt(0)")
    a(f"v_cmp_gt_u32 vcc, {expect}, v251")
    a(f"s_cmp_gt_u32 s{S_POLL}, 400000")
    a(f"s_cbranch_scc1 L_wait_{name}_done")
    a(f"s_cbranch_vccnz L_wait_{name}")
    a(f"L_wait_{name}_done:")
    a("s_barrier")

STAMPS=[]
def stamp(a,cfg,name):
    if not cfg.get('stamps'): return
    grp=str(cfg.get('stamps'))
    if '.' in name:
        if name.split('.')[0] not in grp: return
    i=len(STAMPS); STAMPS.append(name)
    assert i<24
    a(f"s_memrealtime s[30:31]")
    a("s_waitcnt lgkmcnt(0)")
    a(f"s_mov_b32 s{78+i}, s30")
def dump_stamps(a,cfg):
    if not cfg.get('stamps'): return
    if cfg.get('dbgstamps'):
        a(f"s_cmp_eq_u32 s2, {cfg['dbgstamps']}")
        a("s_cbranch_scc0 L_end")
        a(f"s_cmp_eq_u32 s{S_WAVE}, 0")
        a("s_cbranch_scc0 L_end")
        a("s_mov_b64 exec, 1")
        for i in range(1,min(len(STAMPS),17)):
            a(f"s_sub_u32 s{T0}, s{78+i}, s78")
            a(f"v_mov_b32 v2, s{T0}")
            a(f"v_mov_b32 v3, {4*(i-1)}")
            a(f"global_store_dword v3, v2, s[{P_DBG}:{P_DBG+1}]")
        a("s_waitcnt vmcnt(0)")
        return
    srd(a, SRD_D, P_WS, WS_SIZE)
    n=len(STAMPS)
    a(f"s_lshl_b32 s{T0}, s2, 2")
    a(f"s_add_u32 s{T0}, s{T0}, s{S_WAVE}")
    a(f"s_lshl_b32 s{T0}, s{T0}, 7")
    a(f"s_add_u32 s{T0}, s{T0}, {WS_DBG+0x800000}")
    a("s_mov_b64 exec, 1")
    for i in range(n):
        a(f"v_mov_b32 v2, s{78+i}")
        a(f"v_mov_b32 v3, {4*i}")
        a(f"buffer_store_dword v2, v3, s[{SRD_D}:{SRD_D+3}], s{T0} offen")
    a("s_waitcnt vmcnt(0)")

def build(cfg):
    a=Asm()
    prologue(a,cfg)
    stamp(a,cfg,'start')
    phaseA_loads(a)
    phaseB_loads(a)
    phaseA(a,cfg)
    stop=cfg.get('stop','')
    if stop=='A':
        a("s_waitcnt vmcnt(0)")
        a("s_branch L_end")
    import phases2
    phases2.rest(a,cfg)
    stamp(a,cfg,'end')
    dump_stamps(a,cfg)
    a("L_end:")
    a("s_endpgm")
    body=a.finalize()
    tab=[]
    for t in range(256):
        row=[2*tab_index(8*t-1+i) for i in range(9)]+[0]*7
        tab.append(".short "+", ".join(str(x) for x in row))
    hdr=open(os.path.join(os.path.dirname(os.path.abspath(__file__)),"header.txt")).read()
    txt=hdr.replace("@LAUNCH@", f"; @launch grid=({cfg.get('grid',NWG)},1,1) block=(256,1,1) lds={LDS_TOTAL}")
    txt+=f""".amdgcn_target "amdgcn-amd-amdhsa--gfx950"
.text
.globl {KNAME}
.p2align 8
.type {KNAME},@function
{KNAME}:
{body}.p2align 6
L_idxtab:
""" + "\n".join(tab) + f"""
.section .rodata,"a"
.p2align 6
.amdhsa_kernel {KNAME}
  .amdhsa_next_free_vgpr 512
  .amdhsa_next_free_sgpr 102
  .amdhsa_accum_offset 256
  .amdhsa_group_segment_fixed_size 0
  .amdhsa_kernarg_size 112
  .amdhsa_user_sgpr_count 2
  .amdhsa_user_sgpr_kernarg_segment_ptr 1
  .amdhsa_system_sgpr_workgroup_id_x 1
.end_amdhsa_kernel
"""
    return txt, a

if __name__=="__main__":
    cfg={}
    out=sys.argv[1]
    for kv in sys.argv[2:]:
        k,v=kv.split('='); cfg[k]=int(v) if v.isdigit() else v
    txt,a=build(cfg)
    open(out,"w").write(txt)
    if STAMPS: open(out+".stamps","w").write(" ".join(STAMPS))
    print(f"wrote {out}: {a.ninstr} instrs, {a.nnops} auto nops, {len(txt)} bytes")
```

```python
from gen import *

LOG2E = 0x3fb8aa3b
INV2PI = 0x3e22f983

def cmul(a, z, p, q):
    a(f"v_pk_mul_f32 v[{z}:{z+1}], v[{p}:{p+1}], v[{q}:{q+1}] op_sel:[0,0] op_sel_hi:[0,1]")
    a(f"v_pk_fma_f32 v[{z}:{z+1}], v[{p}:{p+1}], v[{q}:{q+1}], v[{z}:{z+1}] op_sel:[1,1,0] op_sel_hi:[1,0,1] neg_lo:[0,1,0]")

def cmul2(a, z, p, q):
    for j in range(2):
        o=40*j
        a(f"v_pk_mul_f32 v[{z+o}:{z+o+1}], v[{p+o}:{p+o+1}], v[{q+o}:{q+o+1}] op_sel:[0,0] op_sel_hi:[0,1]")
    for j in range(2):
        o=40*j
        a(f"v_pk_fma_f32 v[{z+o}:{z+o+1}], v[{p+o}:{p+o+1}], v[{q+o}:{q+o+1}], v[{z+o}:{z+o+1}] op_sel:[1,1,0] op_sel_hi:[1,0,1] neg_lo:[0,1,0]")

class Rot:
    def __init__(s,base,n,step): s.base,s.n,s.step,s.i=base,n,step,0
    def next(s):
        r=s.base+s.step*(s.i%s.n); s.i+=1; return r

def phaseB(a, cfg):
    R=80
    AL,BE,E1,E2,E4,W8,E256,X0 = R,R+1,R+2,R+4,R+6,R+8,R+10,R+12
    CA=R+14
    MM=R+22
    CB=R+24
    TT=R+32
    pk=Rot(160,8,2)
    a(f"""
    s_waitcnt lgkmcnt(0)
    s_lshr_b32 s{T3}, s{S_WAVE}, 1
    s_lshl_b32 s{T3}, s{T3}, 4
    s_lshr_b32 s{T4}, s{S_LDT}, s{T3}
    s_lshl_b32 s{T4}, s{T4}, 16
    v_mov_b32 v76, {LOG2E}
    v_mul_f32 v76, s{T4}, v76
    v_exp_f32 v76, v76
    v_cvt_pk_bf16_f32 v76, v76, v76
    v_lshlrev_b32 v76, 16, v76
    v_mul_f32 v77, 0xbfb8aa3b, v76         ; -dt*log2e
    v_mul_f32 v78, {INV2PI}, v76           ; dt/(2pi)
    v_add_f32 v79, v76, v76                ; 2dt
    s_waitcnt vmcnt(4)
    """)
    for j in range(2):
        o=40*j
        un=(lambda d,s: f"v_lshlrev_b32 v{d}, 16, v{s}") if j==0 else (lambda d,s: f"v_and_b32 v{d}, 0xffff0000, v{s}")
        a(un(TT+o,66)); a(un(BE+o,67)); a(un(X0+o,68)); a(un(X0+1+o,69))
        a(f"v_mul_f32 v{TT+o}, {LOG2E}, v{TT+o}")
        a(f"v_exp_f32 v{TT+o}, v{TT+o}")
    a(f"v_cvt_pk_bf16_f32 v{TT+1}, v{TT}, v{TT+40}")
    a(f"v_lshlrev_b32 v{AL}, 16, v{TT+1}")
    a(f"v_and_b32 v{AL+40}, 0xffff0000, v{TT+1}")
    for j in range(2):
        o=40*j
        a(f"""
        v_mul_f32 v{AL+o}, v{AL+o}, v77
        v_mul_f32 v{BE+o}, v{BE+o}, v78
        v_mul_f32 v{X0+o}, v{X0+o}, v79
        v_mul_f32 v{X0+1+o}, v{X0+1+o}, v79
        """)
    for (dst,mul) in ((E1,None),(E256,256.0)):
        for j in range(2):
            o=40*j
            if mul:
                a(f"v_mul_f32 v{TT+o}, 0x43800000, v{AL+o}")
                a(f"v_mul_f32 v{TT+1+o}, 0x43800000, v{BE+o}")
                a(f"v_exp_f32 v{TT+o}, v{TT+o}")
                a(f"v_fract_f32 v{TT+1+o}, v{TT+1+o}")
            else:
                a(f"v_exp_f32 v{TT+o}, v{AL+o}")
                a(f"v_fract_f32 v{TT+1+o}, v{BE+o}")
            a(f"v_cos_f32 v{TT+2+o}, v{TT+1+o}")
            a(f"v_sin_f32 v{TT+3+o}, v{TT+1+o}")
        for j in range(2):
            o=40*j
            a(f"v_mul_f32 v{dst+o}, v{TT+o}, v{TT+2+o}")
            a(f"v_mul_f32 v{dst+1+o}, v{TT+o}, v{TT+3+o}")
    cmul2(a,E2,E1,E1); cmul2(a,E4,E2,E2); cmul2(a,W8,E4,E4)
    stamp(a,cfg,'B.setup')
    a(f"""
    s_mul_i32 s{T3}, s{S_WAVE}, {KG_WAVE}
    s_add_u32 s{T3}, s{T3}, {KG_OFF}
    v_lshl_add_u32 v75, v1, 3, s{T3}
    """)
    def wrow(row, src, neg):
        p=pk.next()
        n='-' if neg else ''
        a(f"v_cvt_pk_bf16_f32 v{p}, v{src}, {n}v{src+1}")
        a(f"v_cvt_pk_bf16_f32 v{p+1}, v{src+40}, {n}v{src+41}")
        a(f"ds_write_b64 v75, v[{p}:{p+1}] offset:{row*KG_ROW}")
    p=pk.next()
    a(f"v_mov_b32 v{p}, 0x3f80\nv_mov_b32 v{p+1}, 0x3f80")
    a(f"ds_write_b64 v75, v[{p}:{p+1}] offset:0")
    cmul2(a,CA+4,W8,W8)
    cmul2(a,CA+6,CA+4,W8)
    cmul2(a,MM,CA+4,CA+4)
    wrow(1,W8,True); wrow(2,CA+4,True); wrow(3,CA+6,True)
    cur=[None,W8,CA+4,CA+6]
    for g in range(1,8):
        dstb = CB if g%2==1 else CA
        for c in range(4):
            dst=dstb+2*c
            if g==1 and c==0:
                wrow(4,MM,True); cur[0]=MM
                continue
            if g==2 and c==0:
                cmul2(a,dst,MM,MM)
            else:
                cmul2(a,dst,cur[c],MM)
            cur[c]=dst
            wrow(4*g+c,dst,True)
    stamp(a,cfg,'B.Y')
    a(f"""
    v_and_b32 v156, 31, v1
    v_mul_u32_u24 v156, {KG_ROW}, v156
    v_lshrrev_b32 v157, 5, v1
    v_lshl_add_u32 v156, v157, 4, v156
    v_add_u32 v156, s{T3}, v156
    s_waitcnt lgkmcnt(0)
    """)
    for s in range(16):
        a(f"ds_read_b128 v[{176+4*s}:{179+4*s}], v156 offset:{32*s}")
        if s==11: a("s_waitcnt lgkmcnt(8)")
    XA=CA; XB=CB
    xs=[X0, CA, CA+2, CA+4, CA+6, CB, CB+2, CB+4]
    cmul2(a,xs[1],X0,E1)
    cmul2(a,xs[2],X0,E2)
    cmul2(a,xs[3],xs[1],E2)
    cmul2(a,xs[4],X0,E4)
    cmul2(a,xs[5],xs[1],E4)
    cmul2(a,xs[6],xs[2],E4)
    cmul2(a,xs[7],xs[3],E4)
    a("s_waitcnt lgkmcnt(0)")
    for i in range(8): wrow(i,xs[i],False)
    x256,x258,x260,x262,x512,x516,x768,x772 = CA,CA+2,CA+4,CA+6,CB,CB+2,CB+4,CB+6
    cmul2(a,x256,X0,E256); wrow(8,x256,False)
    cmul2(a,x512,x256,E256)
    cmul2(a,x258,x256,E2); wrow(9,x258,False)
    cmul2(a,x260,x256,E4); wrow(10,x260,False)
    cmul2(a,x768,x512,E256)
    cmul2(a,x262,x258,E4); wrow(11,x262,False)
    wrow(12,x512,False)
    cmul2(a,x516,x512,E4); wrow(13,x516,False)
    wrow(14,x768,False)
    cmul2(a,x772,x768,E4); wrow(15,x772,False)
    chain=[CA,CA+2,CA+4,CA+6,MM]
    prev=x768
    for i,dst in enumerate(chain):
        cmul2(a,dst,prev,E256); wrow(16+i,dst,False); prev=dst
    a("s_waitcnt lgkmcnt(0)")
    for s in range(16):
        r=2+4*s
        a(f"ds_read_b128 v[{r}:{r+3}], v156 offset:{32*s}")
        if s==11: a("s_waitcnt lgkmcnt(8)")
    for s in range(16):
        if s==4: a("s_waitcnt lgkmcnt(4)")
        if s==0: a("s_waitcnt lgkmcnt(12)") if False else None
        if s==12: a("s_waitcnt lgkmcnt(0)")
        r=2+4*s
        c = "0" if s==0 else "a[0:15]"
        if s==8: a("s_waitcnt lgkmcnt(0)")
        a(f"v_mfma_f32_32x32x16_bf16 a[0:15], v[{r}:{r+3}], v[{176+4*s}:{179+4*s}], {c}")
    stamp(a,cfg,'B.mfma')
    a(f"""
    s_mul_i32 s{T3}, s{S_WAVE}, 3072
    s_add_u32 s{T3}, s{T3}, {TP_OFF}
    v_and_b32 v76, 31, v1
    v_lshlrev_b32 v76, 2, v76
    v_lshrrev_b32 v77, 5, v1
    v_lshl_add_u32 v76, v77, 9, v76
    v_add_u32 v76, s{T3}, v76
    """)
    for v in range(12):
        a(f"ds_write_b32 v76, a{v} offset:{(8*(v>>2)+(v&3))*128}")
    a("s_waitcnt lgkmcnt(0)")
    a("s_barrier")
    a(f"""
    v_lshlrev_b32 v76, 3, v0
    v_lshrrev_b32 v77, 7, v0
    v_and_b32 v78, 127, v0
    v_add_u32 v78, 256, v78
    v_mul_u32_u24 v79, 6144, v77
    v_lshl_add_u32 v79, v78, 3, v79
    v_mul_u32_u24 v80, {TF_CH}, v77
    v_lshl_add_u32 v80, v78, 2, v80
    v_lshlrev_b32 v81, 2, v0
    ds_read_b64 v[82:83], v76 offset:{TP_OFF}
    ds_read_b64 v[84:85], v76 offset:{TP_OFF+3072}
    ds_read_b64 v[86:87], v76 offset:{TP_OFF+6144}
    ds_read_b64 v[88:89], v76 offset:{TP_OFF+9216}
    ds_read_b64 v[90:91], v79 offset:{TP_OFF}
    ds_read_b64 v[92:93], v79 offset:{TP_OFF+3072}
    v_and_b32 v94, 1, v0
    v_mul_u32_u24 v94, {TF_CH}, v94
    v_mov_b32 v95, 0
    ds_write_b32 v94, v95 offset:{TF_OFF+1536}
    s_waitcnt lgkmcnt(0)
    v_add_f32 v82, v82, v84
    v_add_f32 v83, v83, v85
    v_add_f32 v86, v86, v88
    v_add_f32 v87, v87, v89
    v_add_f32 v90, v90, v92
    v_add_f32 v91, v91, v93
    v_cvt_pk_bf16_f32 v82, v82, v83
    v_cvt_pk_bf16_f32 v86, v86, v87
    v_cvt_pk_bf16_f32 v90, v90, v91
    ds_write_b32 v81, v82 offset:{TF_OFF}
    ds_write_b32 v81, v86 offset:{TF_OFF+TF_CH}
    ds_write_b32 v80, v90 offset:{TF_OFF}
    s_waitcnt lgkmcnt(0)
    s_barrier
    """)
    for i in range(9):
        src=70+(i>>1)
        a(f"v_and_b32 v{76+i}, 0xffff, v{src}" if i%2==0 else f"v_lshrrev_b32 v{76+i}, 16, v{src}")
    for ch in range(2):
        d=86+10*ch
        for i in range(9):
            a(f"ds_read_u16 v{d+i}, v{76+i} offset:{TF_OFF+ch*TF_CH}")
        if ch==0: a("s_waitcnt lgkmcnt(4)")
    a(f"v_lshlrev_b32 v85, 4, v0")
    for ch in range(2):
        d=86+10*ch
        a(f"s_waitcnt lgkmcnt({9 if ch==0 else 2})")
        e=108+8*ch
        for j in range(4):
            a(f"v_lshl_or_b32 v{e+j}, v{d+2*j+1}, 16, v{d+2*j}")
            a(f"v_lshl_or_b32 v{e+4+j}, v{d+2*j+2}, 16, v{d+2*j+1}")
        a(f"ds_write_b128 v85, v[{e}:{e+3}] offset:{KC_OFF+ch*KC_CH+7*16}")
        a(f"ds_write_b128 v85, v[{e+4}:{e+7}] offset:{KC_OFF+ch*KC_CH+KC_COPY+7*16}")

def dumpK(a):
    a("s_waitcnt lgkmcnt(0)")
    a("s_barrier")
    srd(a, SRD_B, P_WS, WS_SIZE)
    a(f"s_mul_i32 s{T3}, s2, 16896")
    a(f"s_add_u32 s{T3}, s{T3}, {WS_DBG}")
    for m in range(5):
        a(f"v_add_u32 v76, {256*m}, v0")
        a(f"v_lshlrev_b32 v76, 4, v76")
        a(f"v_cmp_gt_u32 vcc, 16896, v76")
        a(f"s_and_saveexec_b64 s[28:29], vcc")
        a(f"s_cbranch_execz L_dk{m}")
        a(f"ds_read_b128 v[80:83], v76 offset:{KC_OFF}")
        a("s_waitcnt lgkmcnt(0)")
        a(f"buffer_store_dwordx4 v[80:83], v76, s[{SRD_B}:{SRD_B+3}], s{T3} offen")
        a(f"L_dk{m}:")
        a("s_mov_b64 exec, s[28:29]")
    a("s_waitcnt vmcnt(0)")

def phaseC_loads(a,cfg):
    for i in range(6):
        a(f"""
        v_add_u32 v16, {64*i}, v1
        v_mul_u32_u24 v17, 6554, v16
        v_lshrrev_b32 v17, 16, v17            ; block = U/10
        v_mul_u32_u24 v18, 10, v17
        v_sub_u32 v18, v16, v18               ; r
        v_lshl_add_u32 v19, v17, 3, v18       ; J
        v_lshlrev_b32 v19, 4, v19
        v_cmp_gt_u32 vcc, 8, v18
        v_mov_b32 v20, 0x10000
        v_cndmask_b32 v{10+i}, v20, v19, vcc
        """)
    a(f"""
    s_lshr_b32 s{T0}, s{S_WAVE}, 1            ; ch
    s_lshl_b32 s{T1}, s2, 1
    s_add_u32 s{T1}, s{T1}, s{T0}             ; d
    s_lshl_b32 s{T1}, s{T1}, 12               ; d*4096
    s_and_b32 s{T2}, s{S_WAVE}, 1
    s_lshl_b32 s{T2}, s{T2}, 1                ; b0 = 2*(w&1)
    s_mul_i32 s{T3}, s{T0}, {UC_CH}
    s_add_u32 s{T3}, s{T3}, {UC_OFF}
    """)
    for bb in range(2):
        a(f"""
        s_add_u32 s{T4}, s{T2}, {bb}
        s_lshl_b32 s{T5}, s{T4}, 2
        s_sub_u32 s{T5}, 12, s{T5}            ; 12-4b
        s_add_u32 s{T6}, s{T1}, s{T5}
        s_add_u32 s{SRD_A}, s{P_WS}, s{T6}
        s_addc_u32 s{SRD_A+1}, s{P_WS+1}, 0
        s_and_b32 s{SRD_A+1}, s{SRD_A+1}, 0xffff
        s_sub_u32 s{SRD_A+2}, 4096, s{T5}
        s_mov_b32 s{SRD_A+3}, 0x20000
        s_mul_i32 s{T4}, s{T4}, {UC_COPY}
        s_add_u32 s{T4}, s{T4}, s{T3}
        """)
        for i in range(6):
            a(f"s_add_u32 m0, s{T4}, {1024*i}")
            a(f"buffer_load_dwordx4 v{10+i}, s[{SRD_A}:{SRD_A+3}], 0 offen sc1 lds")
    srd(a, SRD_B, P_WS, WS_SIZE)
    a(f"""
    s_lshl_b32 s{T5}, s2, 13
    s_add_u32 s{T5}, s{T5}, {WS_XT}
    v_lshlrev_b32 v9, 4, v0
    buffer_load_dwordx4 v[176:179], v9, s[{SRD_B}:{SRD_B+3}], s{T5} offen sc1
    s_add_u32 s{T5}, s{T5}, 4096
    buffer_load_dwordx4 v[180:183], v9, s[{SRD_B}:{SRD_B+3}], s{T5} offen sc1
    """)

def phaseC(a,cfg):
    AS=[16,80]; BS=[48,112]; ACC=144
    a(f"""
    s_lshr_b32 s{T0}, s{S_WAVE}, 1            ; ch
    s_and_b32 s{T1}, s{S_WAVE}, 1             ; h2
    v_and_b32 v2, 15, v1                      ; r / col
    v_lshrrev_b32 v3, 4, v1                   ; q
    v_and_b32 v4, 1, v2
    v_mul_u32_u24 v4, {KC_COPY}, v4
    v_lshrrev_b32 v5, 1, v2
    v_add_u32 v5, v5, v3
    v_lshl_add_u32 v10, v5, 4, v4
    s_mul_i32 s{T2}, s{T0}, {KC_CH}
    s_lshl_b32 s{T3}, s{T1}, 8
    s_add_u32 s{T2}, s{T2}, s{T3}
    s_add_u32 s{T2}, s{T2}, {KC_OFF}
    v_add_u32 v10, s{T2}, v10                 ; A address
    v_and_b32 v4, 3, v2                       ; b
    v_mul_u32_u24 v4, {UC_COPY}, v4
    v_lshrrev_b32 v5, 2, v2                   ; cc
    v_mul_u32_u24 v6, 10, v5
    v_sub_u32 v6, 30, v6
    v_add_u32 v6, v6, v3
    v_lshl_add_u32 v11, v6, 4, v4
    s_mul_i32 s{T2}, s{T0}, {UC_CH}
    s_mul_i32 s{T3}, s{T1}, 320
    s_add_u32 s{T2}, s{T2}, s{T3}
    s_add_u32 s{T2}, s{T2}, {UC_OFF}
    v_add_u32 v11, s{T2}, v11                 ; B address
    v_and_b32 v4, 3, v2
    v_lshlrev_b32 v4, 3, v4                   ; 2b*4
    v_lshl_add_u32 v4, v3, 6, v4              ; +16q*4
    v_mul_u32_u24 v6, 288, v5                 ; cc*(256+32)
    v_add_u32 v4, v4, v6
    s_mul_i32 s{T2}, s{S_WAVE}, {PC_PW}
    s_add_u32 s{T2}, s{T2}, {PC_P}
    v_add_u32 v12, s{T2}, v4
    s_waitcnt vmcnt(0) lgkmcnt(0)
    s_barrier
    """)
    stamp(a,cfg,'C.dma')
    def reads(c):
        st=c&1; out=[]
        for j in range(8):
            out.append(f"ds_read_b128 v[{BS[st]+4*j}:{BS[st]+4*j+3}], v11 offset:{(40*(7-j)+4*c+2*(c>>1))*16}")
            out.append(f"ds_read_b128 v[{AS[st]+4*j}:{AS[st]+4*j+3}], v10 offset:{512*j+64*c}")
        return out
    r0=reads(0)
    for i,x in enumerate(r0):
        a(x)
        if i==11: a("s_waitcnt lgkmcnt(8)")
    for c in range(4):
        st=c&1
        nxt=reads(c+1) if c<3 else []
        a("s_waitcnt lgkmcnt(0)")
        n=0
        for sp in range(8):
            for t in range(sp,8):
                cc = "0" if (c==0 and sp==0) else f"v[{ACC+4*t}:{ACC+4*t+3}]"
                a(f"v_mfma_f32_16x16x32_bf16 v[{ACC+4*t}:{ACC+4*t+3}], v[{AS[st]+4*sp}:{AS[st]+4*sp+3}], v[{BS[st]+4*(t-sp)}:{BS[st]+4*(t-sp)+3}], {cc}")
                n+=1
                if n%2==0 and nxt: a(nxt.pop(0))
    stamp(a,cfg,'C.main')
    for t in range(8):
        a(f"ds_write_b64 v12, v[{ACC+4*t}:{ACC+4*t+1}] offset:{1152*t}")
        a(f"ds_write_b64 v12, v[{ACC+4*t+2}:{ACC+4*t+3}] offset:{1152*t+32}")
    a(f"""
    v_lshlrev_b32 v13, 5, v0                  ; o*32
    v_lshrrev_b32 v14, 3, v0
    v_lshl_add_u32 v13, v14, 5, v13           ; + (o>>3)*32
    v_add_u32 v13, {PC_P}, v13
    v_sub_u32 v14, 255, v0                    ; J
    v_lshrrev_b32 v15, 3, v14
    v_lshl_add_u32 v14, v15, 1, v14
    v_lshlrev_b32 v14, 4, v14
    v_add_u32 v14, {UC_OFF+3*UC_COPY}, v14
    s_lshl_b32 s{T2}, s{S_DSK}, 16            ; D[ch0]
    s_and_b32 s{T3}, s{S_DSK}, 0xffff0000     ; D[ch1]
    s_lshl_b32 s{T5}, s2, 13
    s_add_u32 s{T5}, s{T5}, {WS_HT}
    s_add_u32 s{T6}, s{T5}, 4096
    s_waitcnt lgkmcnt(0)
    s_barrier
    """)
    for ch in range(2):
        b=16+32*ch
        for hf in range(2):
            for k in range(2):
                a(f"ds_read_b128 v[{b+8*hf+4*k}:{b+8*hf+4*k+3}], v13 offset:{(2*ch+hf)*PC_PW+16*k}")
        a(f"ds_read_b128 v[{b+16}:{b+19}], v14 offset:{ch*UC_CH}")
    for ch in range(2):
        b=16+32*ch; xr=176+4*ch; sd=T2+ch
        a(f"s_waitcnt lgkmcnt({5 if ch==0 else 0})")
        for e in range(8):
            ue=7-e
            a(f"v_add_f32 v{b+e}, v{b+e}, v{b+8+e}")
            a(f"v_lshlrev_b32 v{b+20}, 16, v{xr+(e>>1)}" if e%2==0 else f"v_and_b32 v{b+20}, 0xffff0000, v{xr+(e>>1)}")
            a(f"v_lshlrev_b32 v{b+21}, 16, v{b+16+(ue>>1)}" if ue%2==0 else f"v_and_b32 v{b+21}, 0xffff0000, v{b+16+(ue>>1)}")
            a(f"v_add_f32 v{b+e}, v{b+e}, v{b+20}")
            a(f"v_fma_f32 v{b+e}, v{b+21}, s{sd}, v{b+e}")
        for j in range(4):
            a(f"v_cvt_pk_bf16_f32 v{b+24+j}, v{b+2*j}, v{b+2*j+1}")
        a(f"buffer_store_dwordx4 v[{b+24}:{b+27}], v9, s[{SRD_B}:{SRD_B+3}], s{T5+ch} offen sc1")

S_RB, S_FS = 73, 74
HT_LDS = 0
STAT_OFF = 114688
V_SG, V_SU, V_ONE = 192, 208, 224

def ids_D(a):
    a(f"""
    s_lshr_b32 s{T0}, s{S_XCD}, 1
    s_lshl_b32 s{T0}, s{T0}, 2
    s_add_u32 s{S_RB}, s{T0}, s{S_K7}          ; rb = 4*(x>>1) + k/7
    s_and_b32 s{T0}, s{S_XCD}, 1
    s_mul_i32 s{T0}, s{T0}, 7
    s_add_u32 s{S_FS}, s{T0}, s{S_KM7}         ; fs = 7*(x&1) + k%7
    """)

def stageW_gu(a,cfg):
    NS=40
    ids_D(a)
    srd(a, SRD_A, P_WG, D*F*2)
    srd(a, SRD_C, P_WU, D*F*2)
    a(f"""
    v_lshrrev_b32 v2, 2, v1
    v_mul_u32_u24 v2, 3584, v2
    v_and_b32 v3, 3, v1
    v_lshl_add_u32 v2, v3, 4, v2
    s_lshl_b32 s{T0}, s{S_FS}, 8
    s_lshl_b32 s{T1}, s{S_WAVE}, 6
    s_add_u32 s{T0}, s{T0}, s{T1}
    s_mul_i32 s{T1}, s{S_WAVE}, 40960
    v_lshrrev_b32 v3, 4, v1                    ; G
    v_and_b32 v4, 15, v1                       ; i16
    v_lshrrev_b32 v5, 1, v3
    v_lshlrev_b32 v5, 3, v5
    v_lshrrev_b32 v6, 2, v4
    v_add_u32 v5, v5, v6
    v_lshlrev_b32 v5, 6, v5                    ; row*64
    v_and_b32 v6, 1, v3
    v_lshl_add_u32 v5, v6, 5, v5
    v_and_b32 v6, 3, v4
    v_lshl_add_u32 v5, v6, 3, v5
    v_add_u32 v3, s{T1}, v5
    v_mov_b32 v{V_ONE}, s{S_ONES}
    v_mov_b32 v{V_ONE+1}, s{S_ONES}
    v_mov_b32 v{V_ONE+2}, s{S_ONES}
    v_mov_b32 v{V_ONE+3}, s{S_ONES}
    """)
    def dma(i):
        s_,mat=i>>1,i&1
        sd=SRD_A if mat==0 else SRD_C
        a(f"s_add_u32 s{T2}, s{T0}, {s_*57344}")
        a(f"s_add_u32 m0, s{T1}, {(i%NS)*1024}")
        a(f"buffer_load_dwordx4 v2, s[{sd}:{sd+3}], s{T2} offen lds")
    for i in range(NS): dma(i)
    issued=NS
    def smfma(i):
        s_,mat=i>>1,i&1
        dst=V_SG if mat==0 else V_SU
        c="0" if s_==0 else f"v[{dst}:{dst+15}]"
        a(f"v_mfma_f32_32x32x16_bf16 v[{dst}:{dst+15}], a[{4*i}:{4*i+3}], v[{V_ONE}:{V_ONE+3}], {c}")
    for i in range(56):
        a(f"s_waitcnt vmcnt({issued-1-i})")
        a(f"ds_read_b64_tr_b16 a[{4*i}:{4*i+1}], v3 offset:{(i%NS)*1024}")
        a(f"ds_read_b64_tr_b16 a[{4*i+2}:{4*i+3}], v3 offset:{(i%NS)*1024+256}")
        if i>=1:
            a("s_waitcnt lgkmcnt(2)")
            if issued<56:
                dma(issued); issued+=1
            smfma(i-1)
    a("s_waitcnt lgkmcnt(0)")
    smfma(55)

def phaseD_loads(a,cfg):
    srd(a, SRD_B, P_WS, WS_SIZE)
    a(f"""
    v_lshrrev_b32 v2, 4, v1
    v_lshlrev_b32 v3, 2, v2
    v_and_b32 v4, 15, v1
    v_xor_b32 v4, v4, v3
    v_lshlrev_b32 v4, 4, v4
    v_lshl_add_u32 v2, v2, 12, v4              ; voffset
    s_lshl_b32 s{T0}, s{S_RB}, 8
    s_lshl_b32 s{T1}, s{S_WAVE}, 14
    s_add_u32 s{T0}, s{T0}, s{T1}
    s_add_u32 s{T0}, s{T0}, {WS_HT}
    s_lshl_b32 s{T1}, s{S_WAVE}, 10
    """)
    for i in range(28):
        a(f"s_add_u32 s{T2}, s{T0}, {i*65536}")
        a(f"s_add_u32 m0, s{T1}, {i*4096}")
        a(f"buffer_load_dwordx4 v2, s[{SRD_B}:{SRD_B+3}], s{T2} offen sc1 lds")

def phaseD(a,cfg):
    ACC=[16,48]; RING=80; SRING=96; MR=112
    a(f"""
    v_lshrrev_b32 v10, 4, v1                   ; G
    v_and_b32 v11, 15, v1                      ; i16
    v_lshrrev_b32 v12, 2, v11                  ; r
    v_lshrrev_b32 v13, 1, v10
    v_lshl_add_u32 v13, v13, 3, v12            ; 8hh + r
    v_lshlrev_b32 v13, 8, v13
    v_and_b32 v14, 1, v10
    v_lshl_add_u32 v13, v14, 5, v13
    v_and_b32 v14, 3, v11
    v_lshl_add_u32 v13, v14, 3, v13
    """)
    for j in range(4):
        a(f"v_xor_b32 v14, {j}, v12")
        a(f"v_lshl_add_u32 v{2+j}, v14, 6, v13")
        a(f"v_add_u32 v{6+j}, 0x10000, v{2+j}")
    a(f"""
    v_xor_b32 v14, s{S_WAVE}, v12
    v_lshl_add_u32 v10, v14, 6, v13
    v_add_u32 v11, 0x10000, v10
    v_lshlrev_b32 v12, 4, v1
    s_lshl_b32 s{T0}, s{S_RB}, 2
    s_mul_i32 s{T0}, s{T0}, 112
    s_lshl_b32 s{T1}, s{S_FS}, 3
    s_add_u32 s{T0}, s{T0}, s{T1}
    s_lshl_b32 s{T1}, s{S_WAVE}, 1
    s_add_u32 s{T0}, s{T0}, s{T1}
    s_lshl_b32 s{T0}, s{T0}, 10
    s_add_u32 s{T0}, s{T0}, {WS_ACT}
    v_mov_b32 v120, 0
    v_mov_b32 v121, 0
    v_mov_b32 v122, 0
    v_mov_b32 v123, 0
    s_waitcnt vmcnt(0)
    s_barrier
    """)
    stamp(a,cfg,'D.dma')
    def rd(j,s_,ring,areg=None):
        r=ring+4*(s_%4)
        ad=(2+j if s_<16 else 6+j) if areg is None else (areg if s_<16 else areg+1)
        o=4096*(s_%16)
        return [f"ds_read_b64_tr_b16 v[{r}:{r+1}], v{ad} offset:{o}", f"ds_read_b64_tr_b16 v[{r+2}:{r+3}], v{ad} offset:{o+1024}"]
    def epi(j):
        g=ACC[j&1]; u=g+16; m=MR+2*j; r=m+1
        c=124; r2=125
        L_=[f"v_mul_f32 v{c}, 0xbfb8aa3b, v{r}", f"v_mul_f32 v{r2}, v{r}, v{r}"]
        T=[126,127,128,129]
        for v in range(16):
            t=T[v%4]
            L_+= [f"v_fma_f32 v{g+v}, -v{m}, v{V_SG+v}, v{g+v}",
                  f"v_fma_f32 v{u+v}, -v{m}, v{V_SU+v}, v{u+v}",
                  f"v_mul_f32 v{t}, v{c}, v{g+v}",
                  f"v_mul_f32 v{g+v}, v{g+v}, v{u+v}",
                  f"v_exp_f32 v{t}, v{t}",
                  f"v_mul_f32 v{g+v}, v{g+v}, v{r2}",
                  f"v_add_f32 v{t}, 1.0, v{t}",
                  f"v_rcp_f32 v{t}, v{t}",
                  None,
                  f"v_mul_f32 v{g+v}, v{g+v}, v{t}"]
            if v%2==1:
                o=132+4*((v>>3)&1)+((v>>1)&3)
                L_.append(f"v_cvt_pk_bf16_f32 v{o}, v{g+v-1}, v{g+v}")
            if v==7 or v==15:
                o=132+4*((v>>3)&1)
                L_.append(f"buffer_store_dwordx4 v[{o}:{o+3}], v12, s[{SRD_B}:{SRD_B+3}], s{T2} offen offset:{1024*(v>>3)} sc1")
        return [x for x in L_ if x]
    steps=[(j,s_) for j in range(4) for s_ in range(28)]
    PF=3
    for k in range(PF):
        j,s_=steps[k]
        for x in rd(j,s_,RING)+rd(0,s_,SRING,10): a(x)
    pend=[]
    for n,(j,s_) in enumerate(steps):
        if s_==0 and j>0:
            stamp(a,cfg,f'D.p{j-1}')
            if j==1:
                a(f"""
                v_add_f32 v120, v120, v121
                v_add_f32 v122, v122, v123
                v_mov_b32 v121, v120
                v_mov_b32 v123, v122
                v_permlane32_swap_b32 v120, v121
                v_permlane32_swap_b32 v122, v123
                v_add_f32 v120, v120, v121
                v_add_f32 v122, v122, v123
                v_mul_f32 v120, 0x3b124925, v120
                v_mul_f32 v122, 0x3b124925, v122
                v_fma_f32 v122, -v120, v120, v122
                v_max_f32 v122, 0, v122
                v_add_f32 v122, 0x3727c5ac, v122
                v_rsq_f32 v121, v122
                v_and_b32 v122, 31, v1
                v_lshlrev_b32 v122, 3, v122
                v_add_u32 v123, {STAT_OFF}, v122
                s_lshl_b32 s{T1}, s{S_WAVE}, 8
                v_add_u32 v122, s{T1}, v123
                ds_write_b64 v122, v[120:121]
                s_waitcnt lgkmcnt(0)
                s_barrier
                ds_read_b64 v[{MR}:{MR+1}], v123
                ds_read_b64 v[{MR+2}:{MR+3}], v123 offset:256
                ds_read_b64 v[{MR+4}:{MR+5}], v123 offset:512
                ds_read_b64 v[{MR+6}:{MR+7}], v123 offset:768
                s_waitcnt lgkmcnt(0)
                """)
            if j==1: stamp(a,cfg,'D.stat')
            a(f"s_add_u32 s{T2}, s{T0}, {(j-1)*112*1024}")
            pend=epi(j-1)
            if cfg.get('x_noepi'): pend=[x for x in pend if x.startswith('buffer_store')]
            if cfg.get('x_notrans'): pend=[x for x in pend if not (x.startswith('v_exp') or x.startswith('v_rcp'))]
        nrd=0
        if n+PF<len(steps) and not (cfg.get('x_nord') and j>0):
            jj,ss=steps[n+PF]
            for x in rd(jj,ss,RING): a(x)
            nrd+=2
            if jj==0:
                for x in rd(0,ss,SRING,10): a(x)
        newer=0
        for k in range(1,PF+1):
            if n+k<len(steps):
                newer+= 4 if steps[n+k][0]==0 else 2
        if not (j==1 and s_<0): a(f"s_waitcnt lgkmcnt({min(newer,15)})")
        g=ACC[j&1]; u=g+16; b=RING+4*(s_%4)
        cg="0" if s_==0 else f"v[{g}:{g+15}]"; cu="0" if s_==0 else f"v[{u}:{u+15}]"
        a(f"v_mfma_f32_32x32x16_bf16 v[{g}:{g+15}], a[{8*s_}:{8*s_+3}], v[{b}:{b+3}], {cg}")
        if j==0:
            sb=SRING+4*(s_%4)
            for q in range(0 if cfg.get('x_nostat') else 4):
                a(f"v_dot2c_f32_bf16 v{120+(q&1)}, s{S_ONES}, v{sb+q}")
        elif s_>=1:
            for _ in range(3):
                if pend: a(pend.pop(0))
        a(f"v_mfma_f32_32x32x16_bf16 v[{u}:{u+15}], a[{8*s_+4}:{8*s_+7}], v[{b}:{b+3}], {cu}")
        if j==0:
            for q in range(0 if cfg.get('x_nostat') else 4):
                a(f"v_dot2c_f32_bf16 v{122+(q&1)}, v{sb+q}, v{sb+q}")
        elif s_>=1:
            for _ in range(3):
                if pend: a(pend.pop(0))
        if s_==27:
            while pend: a(pend.pop(0))
    stamp(a,cfg,'D.p3')
    a(f"s_add_u32 s{T2}, s{T0}, {3*112*1024}")
    for x in epi(3): a(x)

S_RB2, S_NT = 75, 76
def ids_E(a):
    a(f"""
    s_lshl_b32 s{S_RB2}, s{S_XCD}, 2
    s_add_u32 s{S_RB2}, s{S_RB2}, s{S_K7}      ; rb2 = 4x + k/7
    s_mov_b32 s{S_NT}, s{S_KM7}
    """)

def stageW_d(a,cfg):
    NS=20
    srd(a, SRD_A, P_WD, F*D*2)
    a(f"""
    v_lshrrev_b32 v2, 3, v1                    ; row
    v_lshrrev_b32 v3, 1, v2
    v_and_b32 v3, 1, v3
    v_lshlrev_b32 v3, 2, v3
    v_and_b32 v4, 7, v1
    v_xor_b32 v4, v4, v3
    v_mul_u32_u24 v2, 896, v2
    v_lshl_add_u32 v2, v4, 4, v2
    s_mul_i32 s{T0}, s{S_WAVE}, {448*896}
    s_lshl_b32 s{T1}, s{S_NT}, 7
    s_add_u32 s{T0}, s{T0}, s{T1}
    s_mul_i32 s{T1}, s{S_WAVE}, 40960
    v_lshrrev_b32 v3, 4, v1                    ; G
    v_and_b32 v4, 15, v1                       ; i16
    v_lshrrev_b32 v5, 1, v3                    ; hh
    v_lshlrev_b32 v5, 2, v5
    v_lshrrev_b32 v6, 2, v4
    v_add_u32 v5, v5, v6                       ; 4hh + r
    v_lshlrev_b32 v5, 7, v5
    v_and_b32 v6, 1, v4
    v_lshl_add_u32 v5, v6, 3, v5               ; +(i16&1)*8
    v_and_b32 v6, 1, v3
    v_lshlrev_b32 v6, 1, v6                    ; 2(G&1)
    v_bfe_u32 v7, v4, 1, 1                     ; (i16&3)>>1
    v_add_u32 v6, v6, v7
    v_lshl_add_u32 v5, v6, 4, v5
    v_add_u32 v5, s{T1}, v5
    v_lshrrev_b32 v6, 3, v4
    v_lshl_add_u32 v3, v6, 6, v5
    v_xor_b32 v6, 1, v6
    v_lshl_add_u32 v4, v6, 6, v5               ; nt2=1
    """)
    def dma(t):
        for hf in range(2):
            a(f"s_add_u32 s{T2}, s{T0}, {(16*t+8*hf)*896}")
            a(f"s_add_u32 m0, s{T1}, {(t%NS)*2048+hf*1024}")
            a(f"buffer_load_dwordx4 v2, s[{SRD_A}:{SRD_A+3}], s{T2} offen lds")
    for t in range(NS): dma(t)
    issued=NS
    for t in range(28):
        a(f"s_waitcnt vmcnt({2*(issued-1-t)})")
        for nt2 in range(2):
            for rd in range(2):
                r=8*t+4*nt2+2*rd
                a(f"ds_read_b64_tr_b16 a[{r}:{r+1}], v{3+nt2} offset:{(t%NS)*2048+rd*1024}")
        if t>=1 and issued<28:
            a("s_waitcnt lgkmcnt(4)")
            dma(issued); issued+=1
    a("s_waitcnt lgkmcnt(0)")

def phaseE_pre(a,cfg):
    srd(a, SRD_B, P_WS, WS_SIZE)
    a(f"""
    v_and_b32 v5, 3, v0
    v_lshlrev_b32 v5, 16, v5
    v_lshrrev_b32 v6, 2, v0
    v_lshl_add_u32 v5, v6, 1, v5
    s_lshl_b32 s{T3}, s{S_NT}, 18
    s_lshl_b32 s{T4}, s{S_RB2}, 7
    s_add_u32 s{T3}, s{T3}, s{T4}
    s_add_u32 s{T3}, s{T3}, {WS_HT}
    """)
    for e in range(16):
        a(f"s_add_u32 s{T4}, s{T3}, {e*4096}")
        a(f"buffer_load_ushort v{224+e}, v5, s[{SRD_B}:{SRD_B+3}], s{T4} offen sc1")

def phaseE(a,cfg):
    NR=36; RING=80; ACC=16
    a(f"""
    v_lshlrev_b32 v2, 4, v1
    s_lshl_b32 s{T0}, s{S_RB2}, 1
    s_mul_i32 s{T0}, s{T0}, 112
    s_mul_i32 s{T1}, s{S_WAVE}, 28
    s_add_u32 s{T0}, s{T0}, s{T1}
    s_lshl_b32 s{T0}, s{T0}, 10
    s_add_u32 s{T0}, s{T0}, {WS_ACT}
    """)
    def ld(i):
        t,lt=i>>1,i&1
        r=RING+4*(i%NR)
        a(f"s_add_u32 s{T2}, s{T0}, {t*1024+lt*114688}")
        a(f"buffer_load_dwordx4 v[{r}:{r+3}], v2, s[{SRD_B}:{SRD_B+3}], s{T2} offen sc1")
    for i in range(NR): ld(i)
    issued=NR
    for t in range(28):
        a(f"s_waitcnt vmcnt({issued-(2*t+2)})")
        for lt in range(2):
            b=RING+4*((2*t+lt)%NR)
            for nt2 in range(2):
                d=ACC+16*(2*lt+nt2)
                c="0" if t==0 else f"v[{d}:{d+15}]"
                a(f"v_mfma_f32_32x32x16_bf16 v[{d}:{d+15}], a[{8*t+4*nt2}:{8*t+4*nt2+3}], v[{b}:{b+3}], {c}")
        while issued<56 and issued-NR<2*t+2:
            ld(issued); issued+=1
    stamp(a,cfg,'E.main')
    a(f"""
    v_and_b32 v3, 31, v1
    v_mul_u32_u24 v3, 272, v3
    v_lshrrev_b32 v4, 5, v1
    v_lshl_add_u32 v3, v4, 4, v3
    s_mul_i32 s{T1}, s{S_WAVE}, 17408
    v_add_u32 v3, s{T1}, v3
    v_lshrrev_b32 v4, 2, v0
    v_mul_u32_u24 v4, 272, v4
    v_and_b32 v5, 3, v0
    v_lshl_add_u32 v4, v5, 6, v4
    """)
    for lt in range(2):
        for nt2 in range(2):
            d=ACC+16*(2*lt+nt2)
            for g in range(4):
                a(f"ds_write_b128 v3, v[{d+4*g}:{d+4*g+3}] offset:{lt*8704+nt2*128+g*32}")
    srd(a, SRD_A, P_OUT, L*D*2)
    a(f"""
    v_lshrrev_b32 v6, 2, v0
    v_mul_u32_u24 v6, 896, v6
    v_lshl_add_u32 v6, v5, 5, v6
    s_mul_i32 s{T1}, s{S_RB2}, {64*896}
    s_lshl_b32 s{T2}, s{S_NT}, 7
    s_add_u32 s{T1}, s{T1}, s{T2}
    s_waitcnt lgkmcnt(0)
    s_barrier
    """)
    for pw in range(4):
        for i in range(4):
            r=80+16*pw+4*i
            a(f"ds_read_b128 v[{r}:{r+3}], v4 offset:{pw*17408+16*i}")
        if pw==2: a("s_waitcnt lgkmcnt(4)")
    a("s_waitcnt lgkmcnt(0)")
    for e in range(16):
        a(f"v_lshlrev_b32 v{224+e}, 16, v{224+e}")
        a(f"v_add_f32 v{80+e}, v{80+e}, v{96+e}")
        a(f"v_add_f32 v{112+e}, v{112+e}, v{128+e}")
        a(f"v_add_f32 v{80+e}, v{80+e}, v{224+e}")
        a(f"v_add_f32 v{80+e}, v{80+e}, v{112+e}")
    for j in range(8):
        a(f"v_cvt_pk_bf16_f32 v{16+j}, v{80+2*j}, v{81+2*j}")
    a(f"buffer_store_dwordx4 v[16:19], v6, s[{SRD_A}:{SRD_A+3}], s{T1} offen")
    a(f"buffer_store_dwordx4 v[20:23], v6, s[{SRD_A}:{SRD_A+3}], s{T1} offen offset:16")

def rest(a,cfg):
    import gen as G
    st=lambda n: G.stamp(a,cfg,n)
    stop=cfg.get('stop','')
    if stop=='A': return
    st('A_done')
    signal(a,'s1',dbg_off=64)
    st('sig1')
    phaseB(a,cfg)
    if stop=='K':
        dumpK(a); a("s_branch L_end"); return
    st('B_done')
    wait(a,'s1',64,1,NWG)
    st('wait1')
    phaseC_loads(a,cfg)
    phaseC(a,cfg)
    if stop=='C':
        a("s_waitcnt vmcnt(0)"); a("s_branch L_end"); return
    st('C_done')
    signal(a,'s2',dbg_off=128)
    st('sig2')
    stageW_gu(a,cfg)
    st('stgGU')
    wait(a,'s2',128,1,NWG)
    st('wait2')
    phaseD_loads(a,cfg)
    phaseD(a,cfg)
    if stop=='D':
        a("s_waitcnt vmcnt(0)"); a("s_branch L_end"); return
    st('D_done')
    a(f"s_lshl_b32 s{T3}, s{S_RB}, 2")
    a(f"s_add_u32 s{T3}, s{T3}, 160")
    signal(a,'s3',dbg_off_sgpr=T3)
    st('sig3')
    ids_E(a)
    stageW_d(a,cfg)
    phaseE_pre(a,cfg)
    st('stgD')
    a(f"s_lshr_b32 s{T3}, s{S_RB2}, 1")
    a(f"s_lshl_b32 s{T3}, s{T3}, 2")
    wait(a,'s3',160,1,14,off_sgpr=T3)
    st('wait3')
    phaseE(a,cfg)
```

```python
import sys
import gen
cfg={}
out=sys.argv[1]
for kv in sys.argv[2:]:
    k,v=kv.split('='); cfg[k]=int(v) if v.lstrip('-').isdigit() else v
txt,a=gen.build(cfg)
open(out,"w").write(txt)
if gen.STAMPS: open(out+".stamps","w").write(" ".join(gen.STAMPS))
print(f"wrote {out}: {a.ninstr} instrs, {a.nnops} auto nops, {len(txt)} bytes")
```

```python
import sys, os
sys.path.insert(0, os.path.dirname(os.path.abspath(__file__)))
from asmlib import Asm
import numpy as np

KNAME = "sequential_preLN__ssm_conv_s4d__swiglu_ffn__prompt_kernel"
L, D, F, N = 2048, 448, 1792, 256
NWG = 224
NHELP = 28
WS_UREV = 0x000000
WS_XT   = 0x200000
WS_HT   = 0x400000
WS_ACT  = 0x600000
WS_WGU  = 0xE00000
WS_WD   = 0x1180000
WS_SUM  = 0x1320000
WS_FLAG = 0x13A0000
WS_DBG  = 0x1400000
WS_SIZE = 0x2000000
KC_OFF   = 0
KC_CH    = 8448
KC_COPY  = 4224
TP_OFF   = 16896
TF_OFF   = 29184
TF_CH    = 1552
UC_OFF   = 32320
UC_CH    = 24832
UC_COPY  = 6208
KG_OFF   = 81984
KG_WAVE  = 16896
KG_ROW   = 528
PA_U     = UC_OFF
PA_X     = UC_OFF + 10240
PA_ROW   = 160
PC_P     = 0
PC_PW    = 9216
LDS_TOTAL = 163840

S_KARG=0
S_WG=2
SRD_A, SRD_B, SRD_C, SRD_D = 4, 8, 12, 16
P_X, P_LA, P_AI, P_CR, P_CI, P_LDT, P_DS, P_BX = 36,38,40,42,44,46,48,50
P_WG, P_WU, P_WD, P_OUT, P_DBG, P_WS = 52,54,56,58,60,62
S_WAVE, S_XCD, S_K, S_K7, S_KM7 = 64,65,66,67,68
S_LDT, S_DSK = 69, 70
S_ONES = 71
S_POLL = 72
T0,T1,T2,T3,T4,T5,T6,T7 = 20,21,22,23,24,25,26,27

def srd(a, s, ptr, size, add=None):
    if add is None:
        a(f"s_mov_b32 s{s}, s{ptr}")
        a(f"s_and_b32 s{s+1}, s{ptr+1}, 0xffff")
    else:
        a(f"s_add_u32 s{s}, s{ptr}, {add}")
        a(f"s_addc_u32 s{s+1}, s{ptr+1}, 0")
        a(f"s_and_b32 s{s+1}, s{s+1}, 0xffff")
    a(f"s_mov_b32 s{s+2}, {size}")
    a(f"s_mov_b32 s{s+3}, 0x20000")

HI = [0,1,2,3,4,5,6,7,256,258,260,262,512,516,768,772,1024,1280,1536,1792,2048]
def bf16_pos(l):
    x=np.float32(l).view(np.uint32)
    r=((int(x)+0x7FFF+((int(x)>>16)&1))>>16)<<16
    return int(np.uint32(r).view(np.float32))
def tab_index(l):
    if l<0: return 768
    p=bf16_pos(l)
    if p==2048: return 20*32
    lo=(p&255)>>3
    return HI.index(p-8*lo)*32+lo

def prologue(a, cfg):
    a(f"""
    s_cmp_ge_u32 s2, {NWG+NHELP}
    s_cbranch_scc1 L_end
    s_load_dwordx16 s[36:51], s[0:1], 0
    s_load_dwordx8 s[52:59], s[0:1], 64
    s_load_dwordx4 s[60:63], s[0:1], 96
    v_and_b32 v1, 63, v0
    v_lshrrev_b32 v2, 6, v0
    s_nop 0
    v_readfirstlane_b32 s{S_WAVE}, v2
    s_mov_b32 s{S_ONES}, 0x3f803f80
    s_cmp_lt_u32 s2, {NHELP}
    s_cbranch_scc1 L_helper
    s_sub_u32 s2, s2, {NHELP}
    s_and_b32 s{S_XCD}, s2, 7
    s_lshr_b32 s{S_K}, s2, 3
    s_mul_i32 s{S_K7}, s{S_K}, 37
    s_lshr_b32 s{S_K7}, s{S_K7}, 8
    s_mul_i32 s{T0}, s{S_K7}, 7
    s_sub_u32 s{S_KM7}, s{S_K}, s{T0}
    s_waitcnt lgkmcnt(0)
    """)

VA_X=2
VB_PAR=66
VB_IDX=70
def phaseA_loads(a):
    a(f"""
    s_lshl_b32 s{T0}, s{S_XCD}, 2
    s_add_u32 s{T0}, s{T0}, s{S_K7}          ; rbA
    s_mul_i32 s{T1}, s{T0}, 57344
    s_lshl_b32 s{T2}, s{S_KM7}, 7
    s_add_u32 s{T2}, s{T2}, s{T1}            ; + slice
    """)
    srd(a, SRD_A, P_X, 1835008)
    a(f"""
    v_and_b32 v80, 7, v0
    v_lshrrev_b32 v81, 3, v0
    v_mul_u32_u24 v82, 896, v81
    v_lshl_add_u32 v82, v80, 4, v82
    v_add_u32 v83, 28672, v82
    """)
    for p in range(2):
        for i in range(7):
            r=VA_X+28*p+4*i
            a(f"buffer_load_dwordx4 v[{r}:{r+3}], v{82+p}, s[{SRD_A}:{SRD_A+3}], s{T1} offen offset:{128*i}")
    a(f"buffer_load_dwordx4 v[58:61], v82, s[{SRD_A}:{SRD_A+3}], s{T2} offen")
    a(f"buffer_load_dwordx4 v[62:65], v83, s[{SRD_A}:{SRD_A+3}], s{T2} offen")

def phaseB_loads(a):
    a(f"""
    s_lshr_b32 s{T3}, s{S_WAVE}, 1
    s_lshl_b32 s{T4}, s2, 1
    s_add_u32 s{T4}, s{T4}, s{T3}            ; d
    s_lshl_b32 s{T4}, s{T4}, 9
    s_and_b32 s{T5}, s{S_WAVE}, 1
    s_lshl_b32 s{T5}, s{T5}, 8
    s_add_u32 s{T4}, s{T4}, s{T5}
    v_lshl_add_u32 v84, v1, 2, s{T4}
    s_lshl_b32 s{T5}, s2, 2
    s_load_dword s{S_LDT}, s[{P_LDT}:{P_LDT+1}], s{T5}
    s_load_dword s{S_DSK}, s[{P_DS}:{P_DS+1}], s{T5}
    global_load_dword v66, v84, s[{P_LA}:{P_LA+1}]
    global_load_dword v67, v84, s[{P_AI}:{P_AI+1}]
    global_load_dword v68, v84, s[{P_CR}:{P_CR+1}]
    global_load_dword v69, v84, s[{P_CI}:{P_CI+1}]
    s_getpc_b64 s[{T6}:{T7}]
L_pc0:
    s_add_u32 s{T6}, s{T6}, L_idxtab-L_pc0
    s_addc_u32 s{T7}, s{T7}, 0
    v_lshlrev_b32 v85, 5, v0
    global_load_dwordx4 v[70:73], v85, s[{T6}:{T7}]
    global_load_dword v74, v85, s[{T6}:{T7}] offset:16
    """)

def phaseA(a, cfg):
    nb=6
    a(f"""
    v_lshrrev_b32 v86, 3, v0
    v_mul_u32_u24 v86, {KC_COPY}, v86
    v_and_b32 v87, 7, v0
    v_lshl_add_u32 v86, v87, 4, v86
    v_mov_b32 v88, 0
    v_mov_b32 v89, 0
    v_mov_b32 v90, 0
    v_mov_b32 v91, 0
    v_cmp_gt_u32 vcc, 32, v0
    s_and_saveexec_b64 s[28:29], vcc
    s_cbranch_execz L_nozero
    ds_write_b128 v86, v[88:91] offset:{KC_OFF}
L_nozero:
    s_mov_b64 exec, s[28:29]
    """)
    for p in range(2):
        a(f"s_waitcnt vmcnt({nb+2+(7 if p==0 else 0)})")
        s1a,s1b,s2a,s2b = 92+4*p,93+4*p,94+4*p,95+4*p
        a(f"v_mov_b32 v{s1a}, 0\nv_mov_b32 v{s1b}, 0\nv_mov_b32 v{s2a}, 0\nv_mov_b32 v{s2b}, 0")
        for j in range(28):
            r=VA_X+28*p+j
            a(f"v_dot2c_f32_bf16 v{s1a if j%2==0 else s1b}, s{S_ONES}, v{r}")
            a(f"v_dot2c_f32_bf16 v{s2a if j%2==0 else s2b}, v{r}, v{r}")
        a(f"v_add_f32 v{s1a}, v{s1a}, v{s1b}\nv_add_f32 v{s2a}, v{s2a}, v{s2b}")
    for p in range(2):
        s1,s2=92+4*p,94+4*p
        for m in ("quad_perm:[1,0,3,2]","quad_perm:[2,3,0,1]","row_half_mirror"):
            a(f"v_add_f32_dpp v{s1}, v{s1}, v{s1} {m} row_mask:0xf bank_mask:0xf")
            a(f"v_add_f32_dpp v{s2}, v{s2}, v{s2} {m} row_mask:0xf bank_mask:0xf")
    a(f"s_mov_b32 s{T3}, 0x3b124925   ; 1/448")
    a(f"s_mov_b32 s{T4}, 0x3727c5ac   ; 1e-5")
    for p in range(2):
        s1,s2=92+4*p,94+4*p
        a(f"""
        v_mul_f32 v{s1}, s{T3}, v{s1}
        v_mul_f32 v{s2}, s{T3}, v{s2}
        v_fma_f32 v{s2}, -v{s1}, v{s1}, v{s2}
        v_max_f32 v{s2}, 0, v{s2}
        v_add_f32 v{s2}, s{T4}, v{s2}
        v_rsq_f32 v{s2}, v{s2}
        v_mul_f32 v{s1}, v{s1}, v{s2}
        """)
    a(f"s_waitcnt vmcnt({nb})")
    for p in range(2):
        s1,s2=92+4*p,94+4*p
        src=58+4*p; dst=100+4*p
        for j in range(4):
            a(f"""
            v_lshlrev_b32 v108, 16, v{src+j}
            v_and_b32 v109, 0xffff0000, v{src+j}
            v_fma_f32 v108, v108, v{s2}, -v{s1}
            v_fma_f32 v109, v109, v{s2}, -v{s1}
            v_cvt_pk_bf16_f32 v{dst+j}, v108, v109
            """)
    a(f"""
    v_mul_u32_u24 v110, {PA_ROW}, v81
    v_lshl_add_u32 v110, v80, 4, v110          ; X addr (p=0)
    v_sub_u32 v111, 63, v81
    v_mul_u32_u24 v111, {PA_ROW}, v111
    v_lshl_add_u32 v111, v80, 4, v111
    v_subrev_u32 v112, {32*PA_ROW}, v111
    ds_write_b128 v110, v[58:61] offset:{PA_X}
    ds_write_b128 v110, v[62:65] offset:{PA_X+32*PA_ROW}
    ds_write_b128 v111, v[100:103] offset:{PA_U}
    ds_write_b128 v112, v[104:107] offset:{PA_U}
    s_waitcnt lgkmcnt(0)
    s_barrier
    """)
    a(f"""
    v_lshrrev_b32 v113, 4, v1                  ; g
    v_and_b32 v114, 15, v1                     ; i
    v_lshrrev_b32 v115, 2, v114
    v_lshl_add_u32 v115, v113, 3, v115         ; row = 8g + (i>>2)
    v_mul_u32_u24 v115, {PA_ROW}, v115
    v_and_b32 v116, 3, v114
    v_lshl_add_u32 v115, v116, 3, v115
    s_lshl_b32 s{T3}, s{S_WAVE}, 5
    v_add_u32 v115, s{T3}, v115
    """)
    for t,(base) in enumerate((PA_U,PA_X)):
        for pr in range(2):
            r=120+8*t+4*pr
            a(f"ds_read_b64_tr_b16 v[{r}:{r+1}], v115 offset:{base+pr*32*PA_ROW}")
            a(f"ds_read_b64_tr_b16 v[{r+2}:{r+3}], v115 offset:{base+pr*32*PA_ROW+4*PA_ROW}")
    srd(a, SRD_B, P_WS, WS_SIZE)
    a(f"""
    s_lshl_b32 s{T3}, s{S_WAVE}, 4
    v_add_u32 v117, s{T3}, v114
    v_lshlrev_b32 v117, 12, v117
    v_lshl_add_u32 v117, v113, 4, v117          ; (16w+i)*4096 + g*16
    s_lshl_b32 s{T3}, s{S_KM7}, 18              ; cs*64*4096
    s_lshl_b32 s{T4}, s{T0}, 7                  ; rb*128
    s_sub_u32 s{T5}, s{T3}, s{T4}
    s_add_u32 s{T5}, s{T5}, {WS_UREV+3968}
    s_add_u32 s{T6}, s{T3}, s{T4}
    s_add_u32 s{T6}, s{T6}, {WS_XT}
    s_lshl_b32 s{T7}, s2, 8
    s_add_u32 s{T7}, s{T7}, {WS_FLAG}
    s_cmp_lt_u32 s2, 88
    s_cselect_b32 s{T7}, s{T7}, {WS_SIZE}
    v_mov_b32 v118, 0
    v_cmp_eq_u32 vcc, 0, v0
    s_and_saveexec_b64 s[28:29], vcc
    s_cbranch_execz L_noflag
    buffer_store_dword v118, v118, s[{SRD_B}:{SRD_B+3}], s{T7} offen sc1
L_noflag:
    s_mov_b64 exec, s[28:29]
    s_waitcnt lgkmcnt(0)
    buffer_store_dwordx4 v[120:123], v117, s[{SRD_B}:{SRD_B+3}], s{T5} offen sc1
    buffer_store_dwordx4 v[124:127], v117, s[{SRD_B}:{SRD_B+3}], s{T5} offen offset:64 sc1
    buffer_store_dwordx4 v[128:131], v117, s[{SRD_B}:{SRD_B+3}], s{T6} offen sc1
    buffer_store_dwordx4 v[132:135], v117, s[{SRD_B}:{SRD_B+3}], s{T6} offen offset:64 sc1
    """)

def signal(a, name, dbg_off_sgpr=None, dbg_off=0):
    a("s_waitcnt vmcnt(0)")
    a("s_barrier")
    a(f"s_cmp_eq_u32 s{S_WAVE}, 0")
    a(f"s_cbranch_scc0 L_sig_{name}")
    a("s_mov_b64 exec, 1")
    if dbg_off_sgpr is not None: a(f"v_mov_b32 v250, s{dbg_off_sgpr}")
    else: a(f"v_mov_b32 v250, {dbg_off}")
    a("v_mov_b32 v251, 1")
    a(f"global_atomic_add v250, v251, s[{P_DBG}:{P_DBG+1}]")
    a("s_mov_b64 exec, -1")
    a(f"L_sig_{name}:")

def wait(a, name, first_off, expects, off_sgpr=None, vt=250, stride=4):
    ncnt=len(expects)
    a(f"s_cmp_eq_u32 s{S_WAVE}, 0")
    a(f"s_cbranch_scc0 L_wait_{name}_done")
    a(f"v_min_u32 v{vt}, {ncnt-1}, v1")
    a(f"v_mov_b32 v{vt+2}, {expects[-1]}")
    for i in range(ncnt-1):
        if expects[i]==expects[-1]: continue
        a(f"v_cmp_eq_u32 vcc, {i}, v{vt}")
        a(f"v_mov_b32 v{vt+1}, {expects[i]}")
        a(f"v_cndmask_b32 v{vt+2}, v{vt+2}, v{vt+1}, vcc")
    a(f"v_mul_u32_u24 v{vt}, {stride}, v{vt}")
    if off_sgpr is not None: a(f"v_add_u32 v{vt}, s{off_sgpr}, v{vt}")
    a(f"s_mov_b32 s{S_POLL}, 0")
    a(f"L_wait_{name}:")
    a(f"global_load_dword v{vt+1}, v{vt}, s[{P_DBG}:{P_DBG+1}] offset:{first_off} sc1")
    a(f"s_add_u32 s{S_POLL}, s{S_POLL}, 1")
    a("s_waitcnt vmcnt(0)")
    a(f"v_cmp_gt_u32 vcc, v{vt+2}, v{vt+1}")
    a(f"s_cmp_gt_u32 s{S_POLL}, 400000")
    a(f"s_cbranch_scc1 L_wait_{name}_done")
    a(f"s_cbranch_vccnz L_wait_{name}")
    a(f"L_wait_{name}_done:")
    a("s_barrier")

STAMPS=[]
def stamp(a,cfg,name):
    if not cfg.get('stamps'): return
    grp=str(cfg.get('stamps'))
    if '.' in name:
        if name.split('.')[0] not in grp: return
    i=len(STAMPS); STAMPS.append(name)
    assert i<24
    a(f"s_memrealtime s[30:31]")
    a("s_waitcnt lgkmcnt(0)")
    a(f"s_mov_b32 s{78+i}, s30")
def dump_stamps(a,cfg):
    if not cfg.get('stamps'): return
    if cfg.get('dbgstamps'):
        a(f"s_cmp_eq_u32 s2, {cfg['dbgstamps']}")
        a("s_cbranch_scc0 L_end")
        a(f"s_cmp_eq_u32 s{S_WAVE}, 0")
        a("s_cbranch_scc0 L_end")
        a("s_mov_b64 exec, 1")
        for i in range(1,min(len(STAMPS),17)):
            a(f"s_sub_u32 s{T0}, s{78+i}, s78")
            a(f"v_mov_b32 v2, s{T0}")
            a(f"v_mov_b32 v3, {4*(i-1)}")
            a(f"global_store_dword v3, v2, s[{P_DBG}:{P_DBG+1}]")
        a("s_waitcnt vmcnt(0)")
        return
    srd(a, SRD_D, P_WS, WS_SIZE)
    n=len(STAMPS)
    a(f"s_lshl_b32 s{T0}, s2, 2")
    a(f"s_add_u32 s{T0}, s{T0}, s{S_WAVE}")
    a(f"s_lshl_b32 s{T0}, s{T0}, 7")
    a(f"s_add_u32 s{T0}, s{T0}, {WS_DBG+0x400000}")
    a("s_mov_b64 exec, 1")
    for i in range(n):
        a(f"v_mov_b32 v2, s{78+i}")
        a(f"v_mov_b32 v3, {4*i}")
        a(f"buffer_store_dword v2, v3, s[{SRD_D}:{SRD_D+3}], s{T0} offen")
    a("s_waitcnt vmcnt(0)")

def build(cfg):
    a=Asm()
    prologue(a,cfg)
    stamp(a,cfg,'start')
    phaseA_loads(a)
    phaseB_loads(a)
    phaseA(a,cfg)
    stop=cfg.get('stop','')
    if stop=='A':
        a("s_waitcnt vmcnt(0)")
        a("s_branch L_end")
    import phases2
    phases2.rest(a,cfg)
    stamp(a,cfg,'end')
    dump_stamps(a,cfg)
    a("s_branch L_end")
    phases2.helper(a,cfg)
    a("L_end:")
    a("s_endpgm")
    body=a.finalize()
    tab=[]
    for t in range(256):
        row=[2*tab_index(8*t-1+i) for i in range(9)]+[0]*7
        tab.append(".short "+", ".join(str(x) for x in row))
    hdr=open(os.path.join(os.path.dirname(os.path.abspath(__file__)),"header.txt")).read()
    txt=hdr.replace("@LAUNCH@", f"; @launch grid=({cfg.get('grid',NWG+NHELP)},1,1) block=(256,1,1) lds={LDS_TOTAL}")
    txt+=f""".amdgcn_target "amdgcn-amd-amdhsa--gfx950"
.text
.globl {KNAME}
.p2align 8
.type {KNAME},@function
{KNAME}:
{body}.p2align 6
L_idxtab:
""" + "\n".join(tab) + f"""
.section .rodata,"a"
.p2align 6
.amdhsa_kernel {KNAME}
  .amdhsa_next_free_vgpr 512
  .amdhsa_next_free_sgpr 102
  .amdhsa_accum_offset 256
  .amdhsa_group_segment_fixed_size 0
  .amdhsa_kernarg_size 112
  .amdhsa_user_sgpr_count 2
  .amdhsa_user_sgpr_kernarg_segment_ptr 1
  .amdhsa_system_sgpr_workgroup_id_x 1
.end_amdhsa_kernel
"""
    return txt, a

if __name__=="__main__":
    cfg={}
    out=sys.argv[1]
    for kv in sys.argv[2:]:
        k,v=kv.split('='); cfg[k]=int(v) if v.isdigit() else v
    txt,a=build(cfg)
    open(out,"w").write(txt)
    if STAMPS: open(out+".stamps","w").write(" ".join(STAMPS))
    print(f"wrote {out}: {a.ninstr} instrs, {a.nnops} auto nops, {len(txt)} bytes")
```

```python
from gen import *

LOG2E = 0x3fb8aa3b
INV2PI = 0x3e22f983

def cmul(a, z, p, q):
    a(f"v_pk_mul_f32 v[{z}:{z+1}], v[{p}:{p+1}], v[{q}:{q+1}] op_sel:[0,0] op_sel_hi:[0,1]")
    a(f"v_pk_fma_f32 v[{z}:{z+1}], v[{p}:{p+1}], v[{q}:{q+1}], v[{z}:{z+1}] op_sel:[1,1,0] op_sel_hi:[1,0,1] neg_lo:[0,1,0]")

def cmul2(a, z, p, q):
    for j in range(2):
        o=40*j
        a(f"v_pk_mul_f32 v[{z+o}:{z+o+1}], v[{p+o}:{p+o+1}], v[{q+o}:{q+o+1}] op_sel:[0,0] op_sel_hi:[0,1]")
    for j in range(2):
        o=40*j
        a(f"v_pk_fma_f32 v[{z+o}:{z+o+1}], v[{p+o}:{p+o+1}], v[{q+o}:{q+o+1}], v[{z+o}:{z+o+1}] op_sel:[1,1,0] op_sel_hi:[1,0,1] neg_lo:[0,1,0]")

class Rot:
    def __init__(s,base,n,step): s.base,s.n,s.step,s.i=base,n,step,0
    def next(s):
        r=s.base+s.step*(s.i%s.n); s.i+=1; return r

def phaseB(a, cfg):
    R=80
    AL,BE,E1,E2,E4,W8,E256,X0 = R,R+1,R+2,R+4,R+6,R+8,R+10,R+12
    CA=R+14
    MM=R+22
    CB=R+24
    TT=R+32
    pk=Rot(160,8,2)
    a(f"""
    s_waitcnt lgkmcnt(0)
    s_lshr_b32 s{T3}, s{S_WAVE}, 1
    s_lshl_b32 s{T3}, s{T3}, 4
    s_lshr_b32 s{T4}, s{S_LDT}, s{T3}
    s_lshl_b32 s{T4}, s{T4}, 16
    v_mov_b32 v76, {LOG2E}
    v_mul_f32 v76, s{T4}, v76
    v_exp_f32 v76, v76
    v_cvt_pk_bf16_f32 v76, v76, v76
    v_lshlrev_b32 v76, 16, v76
    v_mul_f32 v77, 0xbfb8aa3b, v76         ; -dt*log2e
    v_mul_f32 v78, {INV2PI}, v76           ; dt/(2pi)
    v_add_f32 v79, v76, v76                ; 2dt
    s_waitcnt vmcnt({6+(1 if cfg.get('pf_code') else 0)+(6 if cfg.get('pf_tlb') else 0)})
    """)
    for j in range(2):
        o=40*j
        un=(lambda d,s: f"v_lshlrev_b32 v{d}, 16, v{s}") if j==0 else (lambda d,s: f"v_and_b32 v{d}, 0xffff0000, v{s}")
        a(un(TT+o,66)); a(un(BE+o,67)); a(un(X0+o,68)); a(un(X0+1+o,69))
        a(f"v_mul_f32 v{TT+o}, {LOG2E}, v{TT+o}")
        a(f"v_exp_f32 v{TT+o}, v{TT+o}")
    a(f"v_cvt_pk_bf16_f32 v{TT+1}, v{TT}, v{TT+40}")
    a(f"v_lshlrev_b32 v{AL}, 16, v{TT+1}")
    a(f"v_and_b32 v{AL+40}, 0xffff0000, v{TT+1}")
    for j in range(2):
        o=40*j
        a(f"""
        v_mul_f32 v{AL+o}, v{AL+o}, v77
        v_mul_f32 v{BE+o}, v{BE+o}, v78
        v_mul_f32 v{X0+o}, v{X0+o}, v79
        v_mul_f32 v{X0+1+o}, v{X0+1+o}, v79
        """)
    for (dst,mul) in ((E1,None),(E256,256.0)):
        for j in range(2):
            o=40*j
            if mul:
                a(f"v_mul_f32 v{TT+o}, 0x43800000, v{AL+o}")
                a(f"v_mul_f32 v{TT+1+o}, 0x43800000, v{BE+o}")
                a(f"v_exp_f32 v{TT+o}, v{TT+o}")
                a(f"v_fract_f32 v{TT+1+o}, v{TT+1+o}")
            else:
                a(f"v_exp_f32 v{TT+o}, v{AL+o}")
                a(f"v_fract_f32 v{TT+1+o}, v{BE+o}")
            a(f"v_cos_f32 v{TT+2+o}, v{TT+1+o}")
            a(f"v_sin_f32 v{TT+3+o}, v{TT+1+o}")
        for j in range(2):
            o=40*j
            a(f"v_mul_f32 v{dst+o}, v{TT+o}, v{TT+2+o}")
            a(f"v_mul_f32 v{dst+1+o}, v{TT+o}, v{TT+3+o}")
    cmul2(a,E2,E1,E1); cmul2(a,E4,E2,E2); cmul2(a,W8,E4,E4)
    stamp(a,cfg,'B.setup')
    a(f"""
    s_mul_i32 s{T3}, s{S_WAVE}, {KG_WAVE}
    s_add_u32 s{T3}, s{T3}, {KG_OFF}
    v_lshl_add_u32 v75, v1, 3, s{T3}
    """)
    def wrow(row, src, neg):
        p=pk.next()
        n='-' if neg else ''
        a(f"v_cvt_pk_bf16_f32 v{p}, v{src}, {n}v{src+1}")
        a(f"v_cvt_pk_bf16_f32 v{p+1}, v{src+40}, {n}v{src+41}")
        a(f"ds_write_b64 v75, v[{p}:{p+1}] offset:{row*KG_ROW}")
    p=pk.next()
    a(f"v_mov_b32 v{p}, 0x3f80\nv_mov_b32 v{p+1}, 0x3f80")
    a(f"ds_write_b64 v75, v[{p}:{p+1}] offset:0")
    cmul2(a,CA+4,W8,W8)
    cmul2(a,CA+6,CA+4,W8)
    cmul2(a,MM,CA+4,CA+4)
    wrow(1,W8,True); wrow(2,CA+4,True); wrow(3,CA+6,True)
    cur=[None,W8,CA+4,CA+6]
    for g in range(1,8):
        dstb = CB if g%2==1 else CA
        for c in range(4):
            dst=dstb+2*c
            if g==1 and c==0:
                wrow(4,MM,True); cur[0]=MM
                continue
            if g==2 and c==0:
                cmul2(a,dst,MM,MM)
            else:
                cmul2(a,dst,cur[c],MM)
            cur[c]=dst
            wrow(4*g+c,dst,True)
    stamp(a,cfg,'B.Y')
    a(f"s_lshl_b32 s{T5}, s{S_XCD}, 5")
    signal(a,'s1',dbg_off_sgpr=T5)
    stamp(a,cfg,'sig1')
    a(f"""
    v_and_b32 v156, 31, v1
    v_mul_u32_u24 v156, {KG_ROW}, v156
    v_lshrrev_b32 v157, 5, v1
    v_lshl_add_u32 v156, v157, 4, v156
    v_add_u32 v156, s{T3}, v156
    s_waitcnt lgkmcnt(0)
    """)
    for s in range(16):
        a(f"ds_read_b128 v[{176+4*s}:{179+4*s}], v156 offset:{32*s}")
        if s==11: a("s_waitcnt lgkmcnt(8)")
    XA=CA; XB=CB
    xs=[X0, CA, CA+2, CA+4, CA+6, CB, CB+2, CB+4]
    cmul2(a,xs[1],X0,E1)
    cmul2(a,xs[2],X0,E2)
    cmul2(a,xs[3],xs[1],E2)
    cmul2(a,xs[4],X0,E4)
    cmul2(a,xs[5],xs[1],E4)
    cmul2(a,xs[6],xs[2],E4)
    cmul2(a,xs[7],xs[3],E4)
    a("s_waitcnt lgkmcnt(0)")
    for i in range(8): wrow(i,xs[i],False)
    x256,x258,x260,x262,x512,x516,x768,x772 = CA,CA+2,CA+4,CA+6,CB,CB+2,CB+4,CB+6
    cmul2(a,x256,X0,E256); wrow(8,x256,False)
    cmul2(a,x512,x256,E256)
    cmul2(a,x258,x256,E2); wrow(9,x258,False)
    cmul2(a,x260,x256,E4); wrow(10,x260,False)
    cmul2(a,x768,x512,E256)
    cmul2(a,x262,x258,E4); wrow(11,x262,False)
    wrow(12,x512,False)
    cmul2(a,x516,x512,E4); wrow(13,x516,False)
    wrow(14,x768,False)
    cmul2(a,x772,x768,E4); wrow(15,x772,False)
    chain=[CA,CA+2,CA+4,CA+6,MM]
    prev=x768
    for i,dst in enumerate(chain):
        cmul2(a,dst,prev,E256); wrow(16+i,dst,False); prev=dst
    a("s_waitcnt lgkmcnt(0)")
    for s in range(16):
        r=2+4*s
        a(f"ds_read_b128 v[{r}:{r+3}], v156 offset:{32*s}")
        if s==11: a("s_waitcnt lgkmcnt(8)")
    for s in range(16):
        if s==4: a("s_waitcnt lgkmcnt(4)")
        if s==0: a("s_waitcnt lgkmcnt(12)") if False else None
        if s==12: a("s_waitcnt lgkmcnt(0)")
        r=2+4*s
        c = "0" if s==0 else "a[0:15]"
        if s==8: a("s_waitcnt lgkmcnt(0)")
        a(f"v_mfma_f32_32x32x16_bf16 a[0:15], v[{r}:{r+3}], v[{176+4*s}:{179+4*s}], {c}")
    stamp(a,cfg,'B.mfma')
    a(f"""
    s_mul_i32 s{T3}, s{S_WAVE}, 3072
    s_add_u32 s{T3}, s{T3}, {TP_OFF}
    v_and_b32 v76, 31, v1
    v_lshlrev_b32 v76, 2, v76
    v_lshrrev_b32 v77, 5, v1
    v_lshl_add_u32 v76, v77, 9, v76
    v_add_u32 v76, s{T3}, v76
    """)
    for v in range(12):
        a(f"ds_write_b32 v76, a{v} offset:{(8*(v>>2)+(v&3))*128}")
    a("s_waitcnt lgkmcnt(0)")
    a("s_barrier")
    a(f"""
    v_lshlrev_b32 v76, 3, v0
    v_lshrrev_b32 v77, 7, v0
    v_and_b32 v78, 127, v0
    v_add_u32 v78, 256, v78
    v_mul_u32_u24 v79, 6144, v77
    v_lshl_add_u32 v79, v78, 3, v79
    v_mul_u32_u24 v80, {TF_CH}, v77
    v_lshl_add_u32 v80, v78, 2, v80
    v_lshlrev_b32 v81, 2, v0
    ds_read_b64 v[82:83], v76 offset:{TP_OFF}
    ds_read_b64 v[84:85], v76 offset:{TP_OFF+3072}
    ds_read_b64 v[86:87], v76 offset:{TP_OFF+6144}
    ds_read_b64 v[88:89], v76 offset:{TP_OFF+9216}
    ds_read_b64 v[90:91], v79 offset:{TP_OFF}
    ds_read_b64 v[92:93], v79 offset:{TP_OFF+3072}
    v_and_b32 v94, 1, v0
    v_mul_u32_u24 v94, {TF_CH}, v94
    v_mov_b32 v95, 0
    ds_write_b32 v94, v95 offset:{TF_OFF+1536}
    s_waitcnt lgkmcnt(0)
    v_add_f32 v82, v82, v84
    v_add_f32 v83, v83, v85
    v_add_f32 v86, v86, v88
    v_add_f32 v87, v87, v89
    v_add_f32 v90, v90, v92
    v_add_f32 v91, v91, v93
    v_cvt_pk_bf16_f32 v82, v82, v83
    v_cvt_pk_bf16_f32 v86, v86, v87
    v_cvt_pk_bf16_f32 v90, v90, v91
    ds_write_b32 v81, v82 offset:{TF_OFF}
    ds_write_b32 v81, v86 offset:{TF_OFF+TF_CH}
    ds_write_b32 v80, v90 offset:{TF_OFF}
    s_waitcnt lgkmcnt(0)
    s_barrier
    """)
    for i in range(9):
        src=70+(i>>1)
        a(f"v_and_b32 v{76+i}, 0xffff, v{src}" if i%2==0 else f"v_lshrrev_b32 v{76+i}, 16, v{src}")
    for ch in range(2):
        d=86+10*ch
        for i in range(9):
            a(f"ds_read_u16 v{d+i}, v{76+i} offset:{TF_OFF+ch*TF_CH}")
        if ch==0: a("s_waitcnt lgkmcnt(4)")
    a(f"v_lshlrev_b32 v85, 4, v0")
    for ch in range(2):
        d=86+10*ch
        a(f"s_waitcnt lgkmcnt({9 if ch==0 else 2})")
        e=108+8*ch
        for j in range(4):
            a(f"v_lshl_or_b32 v{e+j}, v{d+2*j+1}, 16, v{d+2*j}")
            a(f"v_lshl_or_b32 v{e+4+j}, v{d+2*j+2}, 16, v{d+2*j+1}")
        a(f"ds_write_b128 v85, v[{e}:{e+3}] offset:{KC_OFF+ch*KC_CH+7*16}")
        a(f"ds_write_b128 v85, v[{e+4}:{e+7}] offset:{KC_OFF+ch*KC_CH+KC_COPY+7*16}")

def dumpK(a):
    a("s_waitcnt lgkmcnt(0)")
    a("s_barrier")
    srd(a, SRD_B, P_WS, WS_SIZE)
    a(f"s_mul_i32 s{T3}, s2, 16896")
    a(f"s_add_u32 s{T3}, s{T3}, {WS_DBG}")
    for m in range(5):
        a(f"v_add_u32 v76, {256*m}, v0")
        a(f"v_lshlrev_b32 v76, 4, v76")
        a(f"v_cmp_gt_u32 vcc, 16896, v76")
        a(f"s_and_saveexec_b64 s[28:29], vcc")
        a(f"s_cbranch_execz L_dk{m}")
        a(f"ds_read_b128 v[80:83], v76 offset:{KC_OFF}")
        a("s_waitcnt lgkmcnt(0)")
        a(f"buffer_store_dwordx4 v[80:83], v76, s[{SRD_B}:{SRD_B+3}], s{T3} offen")
        a(f"L_dk{m}:")
        a("s_mov_b64 exec, s[28:29]")
    a("s_waitcnt vmcnt(0)")


S_RB, S_FS, S_RB2, S_NT, S_WCOL = 73, 74, 75, 76, 77
S_WDB, S_ROW = 34, 35
STAT_OFF = 114688
V_SG, V_SU, V_ONE = 192, 208, 224
FL_S2, FL_EARLY, FL_LATE = 0, 56*256, 72*256

def ids(a):
    a(f"""
    s_lshr_b32 s{T0}, s{S_XCD}, 1
    s_lshl_b32 s{T0}, s{T0}, 2
    s_add_u32 s{S_RB}, s{T0}, s{S_K7}
    s_and_b32 s{T0}, s{S_XCD}, 1
    s_mul_i32 s{T0}, s{T0}, 7
    s_add_u32 s{S_FS}, s{T0}, s{S_KM7}         ; GEMM1 f slice    fs = 7*(x&1) + k%7
    s_lshl_b32 s{S_RB2}, s{S_XCD}, 2
    s_add_u32 s{S_RB2}, s{S_RB2}, s{S_K7}
    s_mov_b32 s{S_NT}, s{S_KM7}
    s_lshl_b32 s{S_WCOL}, s{S_FS}, 8
    s_lshl_b32 s{T0}, s{S_WAVE}, 6
    s_add_u32 s{S_WCOL}, s{S_WCOL}, s{T0}
    """)

def flag_add(a,name,nl,soff,vt):
    a(f"s_cmp_eq_u32 s{S_WAVE}, 0")
    a(f"s_cbranch_scc0 L_fa_{name}")
    a(f"s_mov_b64 exec, {(1<<nl)-1}")
    a(f"v_lshlrev_b32 v{vt}, 8, v1")
    a(f"v_mov_b32 v{vt+1}, 1")
    a(f"buffer_atomic_add v{vt+1}, v{vt}, s[{SRD_B}:{SRD_B+3}], s{soff} offen")
    a("s_mov_b64 exec, -1")
    a(f"L_fa_{name}:")

def flag_poll_issue(a,vt,soff):
    a(f"buffer_load_dword v{vt+1}, v{vt}, s[{SRD_B}:{SRD_B+3}], s{soff} offen sc1")

def flag_wait(a,name,expect,vt,soff,first_issued=False,nnewer=0):
    a(f"s_mov_b32 s{S_POLL}, 0")
    if first_issued:
        a(f"s_waitcnt vmcnt({nnewer})")
        a(f"v_cmp_gt_u32 vcc, {expect}, v{vt+1}")
        a(f"s_cbranch_vccz L_fw_{name}_done")
    a(f"L_fw_{name}:")
    flag_poll_issue(a,vt,soff)
    a(f"s_add_u32 s{S_POLL}, s{S_POLL}, 1")
    a("s_waitcnt vmcnt(0)")
    a(f"v_cmp_gt_u32 vcc, {expect}, v{vt+1}")
    a(f"s_cmp_gt_u32 s{S_POLL}, 400000")
    a(f"s_cbranch_scc1 L_fw_{name}_done")
    a(f"s_cbranch_vccnz L_fw_{name}")
    a(f"L_fw_{name}_done:")

def phaseC_pre(a,cfg):
    for i in range(6):
        a(f"""
        v_add_u32 v16, {64*i}, v1
        v_mul_u32_u24 v17, 6554, v16
        v_lshrrev_b32 v17, 16, v17            ; block = U/10
        v_mul_u32_u24 v18, 10, v17
        v_sub_u32 v18, v16, v18               ; r
        v_lshl_add_u32 v19, v17, 3, v18       ; J
        v_lshlrev_b32 v19, 4, v19
        v_cmp_gt_u32 vcc, 8, v18
        v_mov_b32 v20, 0x10000
        v_cndmask_b32 v{184+i}, v20, v19, vcc
        """)
    ids(a)
    a(f"""
    s_lshr_b32 s{T0}, s{S_WAVE}, 1            ; ch
    s_and_b32 s{T1}, s{S_WAVE}, 1             ; h2
    v_and_b32 v2, 15, v1                      ; r / col
    v_lshrrev_b32 v3, 4, v1                   ; q
    v_and_b32 v4, 1, v2
    v_mul_u32_u24 v4, {KC_COPY}, v4
    v_lshrrev_b32 v5, 1, v2
    v_add_u32 v5, v5, v3
    v_lshl_add_u32 v10, v5, 4, v4
    s_mul_i32 s{T2}, s{T0}, {KC_CH}
    s_lshl_b32 s{T3}, s{T1}, 8
    s_add_u32 s{T2}, s{T2}, s{T3}
    s_add_u32 s{T2}, s{T2}, {KC_OFF}
    v_add_u32 v10, s{T2}, v10
    v_and_b32 v4, 3, v2                       ; b
    v_mul_u32_u24 v4, {UC_COPY}, v4
    v_lshrrev_b32 v5, 2, v2                   ; cc
    v_mul_u32_u24 v6, 10, v5
    v_sub_u32 v6, 30, v6
    v_add_u32 v6, v6, v3
    v_lshl_add_u32 v11, v6, 4, v4
    s_mul_i32 s{T2}, s{T0}, {UC_CH}
    s_mul_i32 s{T3}, s{T1}, 320
    s_add_u32 s{T2}, s{T2}, s{T3}
    s_add_u32 s{T2}, s{T2}, {UC_OFF}
    v_add_u32 v11, s{T2}, v11
    v_and_b32 v4, 3, v2
    v_lshlrev_b32 v4, 3, v4                   ; 2b*4
    v_lshl_add_u32 v4, v3, 6, v4              ; +16q*4
    v_mul_u32_u24 v6, 288, v5                 ; cc*(256+32)
    v_add_u32 v4, v4, v6
    s_mul_i32 s{T2}, s{S_WAVE}, {PC_PW}
    s_add_u32 s{T2}, s{T2}, {PC_P}
    v_add_u32 v12, s{T2}, v4
    v_lshlrev_b32 v9, 4, v0
    v_lshrrev_b32 v2, 2, v1
    v_mul_u32_u24 v7, 3584, v2
    v_and_b32 v3, 3, v1
    v_lshl_add_u32 v7, v3, 4, v7
    v_lshrrev_b32 v3, 4, v1                   ; G
    v_and_b32 v4, 15, v1                      ; i16
    v_lshrrev_b32 v5, 1, v3
    v_lshlrev_b32 v5, 3, v5
    v_lshrrev_b32 v6, 2, v4
    v_add_u32 v5, v5, v6
    v_lshlrev_b32 v5, 6, v5                   ; row*64
    v_and_b32 v6, 1, v3
    v_lshl_add_u32 v5, v6, 5, v5
    v_and_b32 v6, 3, v4
    v_lshl_add_u32 v8, v6, 3, v5
    """)
    srd(a, SRD_B, P_WS, WS_SIZE)
    srd(a, SRD_C, P_WG, D*F*2)
    srd(a, SRD_D, P_WU, D*F*2)

def phaseC_loads(a,cfg):
    a(f"""
    s_lshr_b32 s{T0}, s{S_WAVE}, 1            ; ch
    s_lshl_b32 s{T1}, s2, 1
    s_add_u32 s{T1}, s{T1}, s{T0}             ; d
    s_lshl_b32 s{T1}, s{T1}, 12               ; d*4096
    s_and_b32 s{T2}, s{S_WAVE}, 1
    s_lshl_b32 s{T2}, s{T2}, 1                ; b0 = 2*(w&1)
    s_mul_i32 s{T3}, s{T0}, {UC_CH}
    s_add_u32 s{T3}, s{T3}, {UC_OFF}
    """)
    for bb in range(2):
        a(f"""
        s_add_u32 s{T4}, s{T2}, {bb}
        s_lshl_b32 s{T5}, s{T4}, 2
        s_sub_u32 s{T5}, 12, s{T5}            ; 12-4b
        s_add_u32 s{T6}, s{T1}, s{T5}
        s_add_u32 s{SRD_A}, s{P_WS}, s{T6}
        s_addc_u32 s{SRD_A+1}, s{P_WS+1}, 0
        s_and_b32 s{SRD_A+1}, s{SRD_A+1}, 0xffff
        s_sub_u32 s{SRD_A+2}, 4096, s{T5}
        s_mov_b32 s{SRD_A+3}, 0x20000
        s_mul_i32 s{T4}, s{T4}, {UC_COPY}
        s_add_u32 s{T4}, s{T4}, s{T3}
        """)
        for i in range(6):
            a(f"s_add_u32 m0, s{T4}, {1024*i}")
            a(f"buffer_load_dwordx4 v{184+i}, s[{SRD_A}:{SRD_A+3}], 0 offen sc1 lds")
    a(f"""
    s_lshl_b32 s{T5}, s2, 13
    s_add_u32 s{T5}, s{T5}, {WS_XT}
    buffer_load_dwordx4 v[176:179], v9, s[{SRD_B}:{SRD_B+3}], s{T5} offen sc1
    s_add_u32 s{T5}, s{T5}, 4096
    buffer_load_dwordx4 v[180:183], v9, s[{SRD_B}:{SRD_B+3}], s{T5} offen sc1
    """)

NW1 = 18
W1_OFF, W1_WAVE = KG_OFF, NW1*1024
def w_dma(i, lds_sgpr, slot):
    out=[]
    if i%2==0: out.append(f"s_add_u32 s{T7}, s{S_WCOL}, {(i>>1)*57344}")
    out.append(f"s_add_u32 m0, s{lds_sgpr}, {slot*1024}")
    sd=SRD_C if i%2==0 else SRD_D
    out.append(f"buffer_load_dwordx4 v7, s[{sd}:{sd+3}], s{T7} offen lds")
    return out

def phaseC(a,cfg):
    AS=[16,80]; BS=[48,112]; ACC=144
    a(f"""
    s_mul_i32 s{T6}, s{S_WAVE}, {W1_WAVE}
    s_add_u32 s{T6}, s{T6}, {W1_OFF}
    s_waitcnt vmcnt(0) lgkmcnt(0)
    s_barrier
    """)
    stamp(a,cfg,'C.dma')
    def reads(c):
        st=c&1; out=[]
        for j in range(8):
            out.append(f"ds_read_b128 v[{BS[st]+4*j}:{BS[st]+4*j+3}], v11 offset:{(40*(7-j)+4*c+2*(c>>1))*16}")
            out.append(f"ds_read_b128 v[{AS[st]+4*j}:{AS[st]+4*j+3}], v10 offset:{512*j+64*c}")
        return out
    r0=reads(0)
    for i,x in enumerate(r0):
        a(x)
        if i==11: a("s_waitcnt lgkmcnt(8)")
    wi=0; tot=0
    for c in range(4):
        st=c&1
        nxt=reads(c+1) if c<3 else []
        a("s_waitcnt lgkmcnt(0)")
        n=0
        for sp in range(8):
            for t in range(sp,8):
                cc = "0" if (c==0 and sp==0) else f"v[{ACC+4*t}:{ACC+4*t+3}]"
                a(f"v_mfma_f32_16x16x32_bf16 v[{ACC+4*t}:{ACC+4*t+3}], v[{AS[st]+4*sp}:{AS[st]+4*sp+3}], v[{BS[st]+4*(t-sp)}:{BS[st]+4*(t-sp)+3}], {cc}")
                n+=1; tot+=1
                if n%2==0 and nxt: a(nxt.pop(0))
                if tot%7==3 and wi<NW1 and not cfg.get('x_now1'):
                    for x in w_dma(wi,T6,wi): a(x)
                    wi+=1
    assert wi==NW1 or cfg.get('x_now1')
    stamp(a,cfg,'C.main')
    a("s_barrier")
    for t in range(8):
        a(f"ds_write_b64 v12, v[{ACC+4*t}:{ACC+4*t+1}] offset:{1152*t}")
        a(f"ds_write_b64 v12, v[{ACC+4*t+2}:{ACC+4*t+3}] offset:{1152*t+32}")
    a(f"""
    v_lshlrev_b32 v13, 5, v0                  ; o*32
    v_lshrrev_b32 v14, 3, v0
    v_lshl_add_u32 v13, v14, 5, v13           ; + (o>>3)*32
    v_sub_u32 v14, 255, v0                    ; J
    v_lshrrev_b32 v15, 3, v14
    v_lshl_add_u32 v14, v15, 1, v14
    v_lshlrev_b32 v14, 4, v14
    v_add_u32 v14, {UC_OFF+3*UC_COPY}, v14
    s_lshl_b32 s{T2}, s{S_DSK}, 16            ; D[ch0]
    s_and_b32 s{T3}, s{S_DSK}, 0xffff0000     ; D[ch1]
    s_lshl_b32 s{T4}, s2, 13
    s_add_u32 s{T4}, s{T4}, {WS_HT}
    s_add_u32 s{T5}, s{T4}, 4096
    s_waitcnt lgkmcnt(0)
    s_barrier
    """)
    for ch in range(2):
        b=16+32*ch
        for hf in range(2):
            for k in range(2):
                a(f"ds_read_b128 v[{b+8*hf+4*k}:{b+8*hf+4*k+3}], v13 offset:{PC_P+(2*ch+hf)*PC_PW+16*k}")
        a(f"ds_read_b128 v[{b+16}:{b+19}], v14 offset:{ch*UC_CH}")
    for ch in range(2):
        b=16+32*ch; xr=176+4*ch; sd=T2+ch
        a(f"s_waitcnt lgkmcnt({5 if ch==0 else 0})")
        for e in range(8):
            ue=7-e
            a(f"v_add_f32 v{b+e}, v{b+e}, v{b+8+e}")
            a(f"v_lshlrev_b32 v{b+20}, 16, v{xr+(e>>1)}" if e%2==0 else f"v_and_b32 v{b+20}, 0xffff0000, v{xr+(e>>1)}")
            a(f"v_lshlrev_b32 v{b+21}, 16, v{b+16+(ue>>1)}" if ue%2==0 else f"v_and_b32 v{b+21}, 0xffff0000, v{b+16+(ue>>1)}")
            a(f"v_add_f32 v{b+e}, v{b+e}, v{b+20}")
            a(f"v_fma_f32 v{b+e}, v{b+21}, s{sd}, v{b+e}")
        for j in range(4):
            a(f"v_cvt_pk_bf16_f32 v{b+24+j}, v{b+2*j}, v{b+2*j+1}")
        a(f"buffer_store_dwordx4 v[{b+24}:{b+27}], v9, s[{SRD_B}:{SRD_B+3}], s{T4+ch} offen sc1")
    stamp(a,cfg,'C_done')
    a(f"v_add_u32 v2, s{T6}, v8")
    a("s_waitcnt vmcnt(2)")
    for i in range(NW1):
        a(f"ds_read_b64_tr_b16 a[{4*i}:{4*i+1}], v2 offset:{i*1024}")
        a(f"ds_read_b64_tr_b16 a[{4*i+2}:{4*i+3}], v2 offset:{i*1024+256}")
        if i%4==3: a("s_waitcnt lgkmcnt(8)")
    a("s_waitcnt vmcnt(0) lgkmcnt(0)")
    a("s_barrier")
    a(f"s_lshl_b32 s{T0}, s{S_KM7}, 11")
    a(f"s_add_u32 s{T0}, s{T0}, {WS_FLAG+FL_S2}")
    flag_add(a,'s2',8,T0,2)

def stageW2(a,cfg):
    a(f"""
    s_mul_i32 s{T6}, s{S_WAVE}, 40960
    v_add_u32 v2, s{T6}, v8
    v_mov_b32 v{V_ONE}, s{S_ONES}
    v_mov_b32 v{V_ONE+1}, s{S_ONES}
    v_mov_b32 v{V_ONE+2}, s{S_ONES}
    v_mov_b32 v{V_ONE+3}, s{S_ONES}
    """)
    def smfma(i):
        dst=V_SG if i%2==0 else V_SU
        c="0" if i<2 else f"v[{dst}:{dst+15}]"
        a(f"v_mfma_f32_32x32x16_bf16 v[{dst}:{dst+15}], a[{4*i}:{4*i+3}], v[{V_ONE}:{V_ONE+3}], {c}")
    AH=12; n2=56-NW1
    sm=0
    for j in range(n2+AH):
        if j<n2:
            for x in w_dma(NW1+j,T6,j): a(x)
            if sm<NW1: smfma(sm); sm+=1
        k=j-AH
        if k>=0:
            newer=min(j,n2-1)-k
            a(f"s_waitcnt vmcnt({newer})")
            i=NW1+k
            a(f"ds_read_b64_tr_b16 a[{4*i}:{4*i+1}], v2 offset:{k*1024}")
            a(f"ds_read_b64_tr_b16 a[{4*i+2}:{4*i+3}], v2 offset:{k*1024+256}")
            if k>=2:
                a("s_waitcnt lgkmcnt(4)")
                while sm<=NW1+k-2: smfma(sm); sm+=1
    a("s_waitcnt lgkmcnt(0)")
    while sm<56: smfma(sm); sm+=1

def wait2(a,cfg):
    a(f"s_cmp_eq_u32 s{S_WAVE}, 0")
    a("s_cbranch_scc0 L_w2_skip")
    a(f"""
    v_min_u32 v2, 6, v1
    v_lshlrev_b32 v2, 11, v2
    s_lshl_b32 s{T0}, s{S_XCD}, 8
    s_add_u32 s{T0}, s{T0}, {WS_FLAG+FL_S2}
    v_mov_b32 v5, 16
    s_mov_b32 s{S_POLL}, 0
    L_w2:
    buffer_load_dword v3, v2, s[{SRD_B}:{SRD_B+3}], s{T0} offen sc1
    global_load_dword v4, v5, s[{P_DBG}:{P_DBG+1}] sc1
    s_add_u32 s{S_POLL}, s{S_POLL}, 1
    s_waitcnt vmcnt(0)
    v_cmp_gt_u32 s[28:29], {NHELP}, v4
    v_cmp_gt_u32 vcc, 32, v3
    s_cmp_gt_u32 s{S_POLL}, 400000
    s_cbranch_scc1 L_w2_done
    s_or_b64 vcc, vcc, s[28:29]
    s_cbranch_vccnz L_w2
    L_w2_done:
    L_w2_skip:
    s_barrier
    """)

WD_PRE = [('v',140+4*i) for i in range(13)] + [('v',224+4*i) for i in range(8)] + [('a',224+4*i) for i in range(8)] + [('v',96+4*i) for i in range(3)]
def wd_reg(i):
    f,r = WD_PRE[i] if i<32 else ('a',4*(i-32))
    return f"{f}[{r}:{r+3}]"

class VM:
    def __init__(s): s.n=0
    def add(s): s.n+=1; return s.n-1
    def after(s,k): return s.n-1-k

def phaseD(a,cfg):
    ACC=[16,48]; RING=80; MR=112
    a(f"""
    v_lshrrev_b32 v2, 4, v1
    v_lshlrev_b32 v3, 2, v2
    v_and_b32 v4, 15, v1
    v_xor_b32 v4, v4, v3
    v_lshlrev_b32 v4, 4, v4
    v_lshl_add_u32 v14, v2, 12, v4
    s_lshl_b32 s{T0}, s{S_RB}, 8
    s_lshl_b32 s{T1}, s{S_WAVE}, 14
    s_add_u32 s{T0}, s{T0}, s{T1}
    s_add_u32 s{T0}, s{T0}, {WS_HT}
    s_lshl_b32 s{T1}, s{S_WAVE}, 10
    """)
    def hdma(i):
        return [f"s_add_u32 s{T2}, s{T0}, {i*65536}", f"s_add_u32 m0, s{T1}, {i*4096}",
                f"buffer_load_dwordx4 v14, s[{SRD_B}:{SRD_B+3}], s{T2} offen sc1 lds"]
    for i in range(14):
        for x in hdma(i): a(x)
    a(f"""
    v_lshrrev_b32 v10, 4, v1                   ; G
    v_and_b32 v11, 15, v1                      ; i16
    v_lshrrev_b32 v12, 2, v11                  ; r
    v_lshrrev_b32 v13, 1, v10
    v_lshl_add_u32 v13, v13, 3, v12            ; 8hh + r
    v_lshlrev_b32 v13, 8, v13
    v_and_b32 v15, 1, v10
    v_lshl_add_u32 v13, v15, 5, v13
    v_and_b32 v15, 3, v11
    v_lshl_add_u32 v13, v15, 3, v13
    """)
    for j in range(4):
        a(f"v_xor_b32 v15, {j}, v12")
        a(f"v_lshl_add_u32 v{2+j}, v15, 6, v13")
        a(f"v_add_u32 v{6+j}, 0x10000, v{2+j}")
    a(f"""
    v_xor_b32 v15, s{S_WAVE}, v12
    v_lshl_add_u32 v10, v15, 6, v13
    v_add_u32 v15, 0x10000, v10
    v_lshlrev_b32 v11, 4, v1
    v_mov_b32 v120, 0
    v_mov_b32 v121, 0
    v_mov_b32 v122, 0
    v_mov_b32 v123, 0
    """)
    def rd(ad0,ad1,s_,r):
        ad=ad0 if s_<16 else ad1
        o=4096*(s_%16)
        return [f"ds_read_b64_tr_b16 v[{r}:{r+1}], v{ad} offset:{o}", f"ds_read_b64_tr_b16 v[{r+2}:{r+3}], v{ad} offset:{o+1024}"]
    for c in range(4):
        a(f"s_waitcnt vmcnt({7 if c<3 else 0})")
        a("s_barrier")
        SR=[96,100,104,108,124,128,132]
        for q,s_ in enumerate(range(7*c,7*c+7)):
            for x in rd(10,15,s_,SR[q]): a(x)
        for q,s_ in enumerate(range(7*c,7*c+7)):
            if c<2:
                for x in hdma(7*(c+2)+q): a(x)
            a(f"s_waitcnt lgkmcnt({2*(6-q)})")
            for e in range(4):
                a(f"v_dot2c_f32_bf16 v{120+(e&1)}, s{S_ONES}, v{SR[q]+e}")
                a(f"v_dot2c_f32_bf16 v{122+(e&1)}, v{SR[q]+e}, v{SR[q]+e}")
    stamp(a,cfg,'D.dma')
    steps=[(j,s_) for j in range(4) for s_ in range(28)]
    PF=3
    for k in range(PF):
        j,s_=steps[k]
        for x in rd(2+j,6+j,s_,RING+4*(s_%4)): a(x)
    a(f"""
    s_lshl_b32 s{T0}, s{S_RB}, 2
    s_mul_i32 s{T0}, s{T0}, 112
    s_lshl_b32 s{T1}, s{S_FS}, 3
    s_add_u32 s{T0}, s{T0}, s{T1}
    s_lshl_b32 s{T1}, s{S_WAVE}, 1
    s_add_u32 s{T0}, s{T0}, s{T1}
    s_lshl_b32 s{T0}, s{T0}, 10
    s_add_u32 s{T0}, s{T0}, {WS_ACT}
    s_lshl_b32 s{S_WDB}, s{S_NT}, 2
    s_add_u32 s{S_WDB}, s{S_WDB}, s{S_WAVE}
    s_mul_i32 s{S_WDB}, s{S_WDB}, {56*1024}
    s_add_u32 s{S_WDB}, s{S_WDB}, {WS_WD}
    v_add_f32 v120, v120, v121
    v_add_f32 v122, v122, v123
    v_mov_b32 v121, v120
    v_mov_b32 v123, v122
    v_permlane32_swap_b32 v120, v121
    v_permlane32_swap_b32 v122, v123
    v_add_f32 v120, v120, v121
    v_add_f32 v122, v122, v123
    v_mul_f32 v120, 0x3b124925, v120
    v_mul_f32 v122, 0x3b124925, v122
    v_fma_f32 v122, -v120, v120, v122
    v_max_f32 v122, 0, v122
    v_add_f32 v122, 0x3727c5ac, v122
    v_rsq_f32 v121, v122
    v_and_b32 v122, 31, v1
    v_lshlrev_b32 v122, 3, v122
    v_add_u32 v123, {STAT_OFF}, v122
    s_lshl_b32 s{T1}, s{S_WAVE}, 8
    v_add_u32 v122, s{T1}, v123
    ds_write_b64 v122, v[120:121]
    """)
    vm=VM()
    def wd_load(i):
        out=[]
        if i%4==0: out.append(f"s_add_u32 s{T7}, s{S_WDB}, {i*1024}")
        out.append(f"buffer_load_dwordx4 {wd_reg(i)}, v11, s[{SRD_B}:{SRD_B+3}], s{T7} offen offset:{(i%4)*1024} sc1")
        return out
    def epi(j):
        g=ACC[j&1]; u=g+16; m=MR+2*j; r=m+1
        c=124; r2=125
        L_=[f"v_mul_f32 v{c}, 0xbfb8aa3b, v{r}", f"v_mul_f32 v{r2}, v{r}, v{r}"]
        T=[126,127,128,129]
        for v0 in range(0,16,4):
            vs=range(v0,v0+4)
            L_+=[f"v_fma_f32 v{g+v}, -v{m}, v{V_SG+v}, v{g+v}" for v in vs]
            L_+=[f"v_fma_f32 v{u+v}, -v{m}, v{V_SU+v}, v{u+v}" for v in vs]
            L_+=[f"v_mul_f32 v{T[v%4]}, v{c}, v{g+v}" for v in vs]
            for v in vs:
                L_+=[f"v_exp_f32 v{T[v%4]}, v{T[v%4]}", f"v_mul_f32 v{g+v}, v{g+v}, v{u+v}"]
            for v in vs:
                L_+=[f"v_add_f32 v{T[v%4]}, 1.0, v{T[v%4]}", f"v_mul_f32 v{g+v}, v{g+v}, v{r2}"]
            L_+=[f"v_rcp_f32 v{T[v%4]}, v{T[v%4]}" for v in vs]
            L_+=[f"v_mul_f32 v{g+v}, v{g+v}, v{T[v%4]}" for v in vs]
            o=132+4*((v0>>3)&1)+((v0>>1)&3)
            L_+=[f"v_cvt_pk_bf16_f32 v{o}, v{g+v0}, v{g+v0+1}", f"v_cvt_pk_bf16_f32 v{o+1}, v{g+v0+2}, v{g+v0+3}"]
            if v0 in (4,12):
                o=132+4*((v0>>3)&1)
                L_.append(f"buffer_store_dwordx4 v[{o}:{o+3}], v11, s[{SRD_B}:{SRD_B+3}], s{T2} offen offset:{1024*(v0>>3)} sc1")
        return L_
    def emit(x):
        a(x)
        if x.startswith('buffer_'): return vm.add()
    pend=[]; wdn=0; last_early_store=None
    for n,(j,s_) in enumerate(steps):
        if s_==0 and j>0:
            stamp(a,cfg,f'D.p{j-1}')
            if j==1:
                a(f"""
                s_waitcnt lgkmcnt(0)
                s_barrier
                ds_read_b64 v[{MR}:{MR+1}], v123
                ds_read_b64 v[{MR+2}:{MR+3}], v123 offset:256
                ds_read_b64 v[{MR+4}:{MR+5}], v123 offset:512
                ds_read_b64 v[{MR+6}:{MR+7}], v123 offset:768
                """)
            a(f"s_add_u32 s{T2}, s{T0}, {(j-1)*112*1024}")
            pend=epi(j-1)
            if cfg.get('x_noepi'): pend=[x for x in pend if x.startswith('buffer_store')]
        if n+PF<len(steps):
            jj,ss=steps[n+PF]
            for x in rd(2+jj,6+jj,ss,RING+4*(ss%4)): a(x)
        newer=2*min(PF,len(steps)-1-n)
        a(f"s_waitcnt lgkmcnt({newer})")
        g=ACC[j&1]; u=g+16; b=RING+4*(s_%4)
        cg="0" if s_==0 else f"v[{g}:{g+15}]"; cu="0" if s_==0 else f"v[{u}:{u+15}]"
        a(f"v_mfma_f32_32x32x16_bf16 v[{g}:{g+15}], a[{8*s_}:{8*s_+3}], v[{b}:{b+3}], {cg}")
        if s_>=1:
            for _ in range(3):
                if pend:
                    x=pend.pop(0); k=emit(x)
                    if x.startswith('buffer_store') and j==2: last_early_store=k
        a(f"v_mfma_f32_32x32x16_bf16 v[{u}:{u+15}], a[{8*s_+4}:{8*s_+7}], v[{b}:{b+3}], {cu}")
        if s_>=1:
            for _ in range(3):
                if pend:
                    x=pend.pop(0); k=emit(x)
                    if x.startswith('buffer_store') and j==2: last_early_store=k
        if j<3 and wdn<32 and (n*32)//80>=wdn:
            for x in wd_load(wdn): emit(x)
            wdn+=1
        if j==3 and 2<=s_<=25:
            for x in wd_load(32+s_-2): emit(x)
        if s_==27:
            while pend:
                x=pend.pop(0); k=emit(x)
                if x.startswith('buffer_store') and j==2: last_early_store=k
        if j==3 and s_==10:
            a(f"s_waitcnt vmcnt({vm.after(last_early_store)})")
            a("s_barrier")
            a(f"s_lshl_b32 s{T1}, s{S_RB}, 8")
            a(f"s_add_u32 s{T1}, s{T1}, {WS_FLAG+FL_EARLY}")
            flag_add(a,'early',1,T1,130)
    assert wdn==32
    stamp(a,cfg,'D.p3')
    a(f"""
    s_lshr_b32 s{T3}, s{S_RB2}, 1
    s_lshl_b32 s{T3}, s{T3}, 8
    s_add_u32 s{T4}, s{T3}, {WS_FLAG+FL_LATE}
    s_add_u32 s{T3}, s{T3}, {WS_FLAG+FL_EARLY}
    v_mov_b32 v130, 0
    s_cmp_eq_u32 s{S_WAVE}, 0
    s_cbranch_scc0 L_ep_skip
    """)
    flag_poll_issue(a,130,T3)
    a("L_ep_skip:")
    a(f"s_add_u32 s{T2}, s{T0}, {3*112*1024}")
    for x in epi(3): a(x)
    stamp(a,cfg,'D_done')
    a(f"s_cmp_eq_u32 s{S_WAVE}, 0")
    a("s_cbranch_scc0 L_ew_skip")
    flag_wait(a,'early',14,130,T3,first_issued=True,nnewer=2)
    a("L_ew_skip:")
    a("s_barrier")

def phaseE(a,cfg):
    RING=96; ACC=16; HRES=208
    a(f"""
    s_lshr_b32 s{T0}, s{S_RB2}, 1
    s_lshl_b32 s{T0}, s{T0}, 2
    s_and_b32 s{T1}, s{S_RB2}, 1
    s_add_u32 s{T0}, s{T0}, s{T1}
    s_lshl_b32 s{S_ROW}, s{T0}, 5
    s_mul_i32 s{T0}, s{T0}, 112
    s_mul_i32 s{T1}, s{S_WAVE}, 28
    s_add_u32 s{T0}, s{T0}, s{T1}
    s_lshl_b32 s{T0}, s{T0}, 10
    s_add_u32 s{T0}, s{T0}, {WS_ACT}
    """)
    vm=VM(); pos={}
    def ld(t,lt):
        r=RING+4*t
        if t%4==0: a(f"s_add_u32 s{T2+lt*3}, s{T0}, {t*1024+lt*2*112*1024}")
        a(f"buffer_load_dwordx4 a[{r}:{r+3}], v11, s[{SRD_B}:{SRD_B+3}], s{T2+lt*3} offen offset:{(t%4)*1024} sc1")
        pos[(t,lt)]=vm.add()
    AH=cfg.get('e_ahead',14)
    for t in range(8): ld(t,0)
    a("s_waitcnt vmcnt(8)")
    a("s_barrier")
    a(f"s_lshl_b32 s{T1}, s{S_RB}, 8")
    a(f"s_add_u32 s{T1}, s{T1}, {WS_FLAG+FL_LATE}")
    flag_add(a,'late',1,T1,130)
    stamp(a,cfg,'sig3')
    for t in range(8,AH): ld(t,0)
    a(f"""
    v_and_b32 v5, 3, v0
    v_lshlrev_b32 v5, 16, v5
    v_lshrrev_b32 v6, 2, v0
    v_lshrrev_b32 v7, 5, v6
    v_lshl_add_u32 v6, v7, 5, v6
    v_lshl_add_u32 v5, v6, 1, v5
    s_lshl_b32 s{T3}, s{S_NT}, 18
    s_lshl_b32 s{T1}, s{S_ROW}, 1
    s_add_u32 s{T3}, s{T3}, s{T1}
    s_add_u32 s{T3}, s{T3}, {WS_HT}
    v_mov_b32 v130, 0
    """)
    def hres(e):
        a(f"s_add_u32 s{T1}, s{T3}, {e*4096}")
        a(f"buffer_load_ushort a{HRES+e}, v5, s[{SRD_B}:{SRD_B+3}], s{T1} offen sc1")
        vm.add()
    def step(t,lt):
        b=RING+4*t
        for nt2 in range(2):
            d=ACC+16*(2*lt+nt2)
            c="0" if t==0 else f"v[{d}:{d+15}]"
            a(f"v_mfma_f32_32x32x16_bf16 v[{d}:{d+15}], {wd_reg(2*t+nt2)}, a[{b}:{b+3}], {c}")
    TP=cfg.get('e_poll',12); TC=cfg.get('e_chk',20)
    nl=0
    for t in range(28):
        a(f"s_waitcnt vmcnt({vm.after(pos[(t,0)])})")
        step(t,0)
        if t+AH<28: ld(t+AH,0)
        elif t<TC and t-(28-AH)<16 and t>=28-AH: pass
        if t==TP:
            a(f"s_cmp_eq_u32 s{S_WAVE}, 0")
            a("s_cbranch_scc0 L_lp_skip")
            flag_poll_issue(a,130,T4)
            a("L_lp_skip:")
            kpoll=vm.n-1
        if t==TC:
            a(f"s_cmp_eq_u32 s{S_WAVE}, 0")
            a("s_cbranch_scc0 L_lw_skip")
            flag_wait(a,'late',14,130,T4,first_issued=True,nnewer=vm.after(kpoll))
            a("L_lw_skip:")
            a("s_barrier")
            stamp(a,cfg,'wait3')
        if t>=TC:
            for _ in range(2):
                if nl<=t and nl<AH+2: ld(nl,1); nl+=1
    stamp(a,cfg,'E.early')
    while nl<AH: ld(nl,1); nl+=1
    hn=0
    for t in range(28):
        a(f"s_waitcnt vmcnt({vm.after(pos[(t,1)])})")
        step(t,1)
        if nl<28: ld(nl,1); nl+=1
        elif hn<16:
            hres(hn); hres(hn+1); hn+=2
    while hn<16: hres(hn); hn+=1
    stamp(a,cfg,'E.main')
    a(f"""
    v_and_b32 v3, 31, v1
    v_mul_u32_u24 v3, 272, v3
    v_lshrrev_b32 v4, 5, v1
    v_lshl_add_u32 v3, v4, 4, v3
    s_mul_i32 s{T1}, s{S_WAVE}, 17408
    v_add_u32 v3, s{T1}, v3
    v_lshrrev_b32 v4, 2, v0
    v_mul_u32_u24 v4, 272, v4
    v_and_b32 v5, 3, v0
    v_lshl_add_u32 v4, v5, 6, v4
    """)
    for lt in range(2):
        for nt2 in range(2):
            d=ACC+16*(2*lt+nt2)
            for g in range(4):
                a(f"ds_write_b128 v3, v[{d+4*g}:{d+4*g+3}] offset:{lt*8704+nt2*128+g*32}")
    srd(a, SRD_A, P_OUT, L*D*2)
    a(f"""
    v_mul_u32_u24 v6, 896, v6
    v_lshl_add_u32 v6, v5, 5, v6
    s_mul_i32 s{T1}, s{S_ROW}, 896
    s_lshl_b32 s{T2}, s{S_NT}, 7
    s_add_u32 s{T1}, s{T1}, s{T2}
    s_waitcnt lgkmcnt(0)
    s_barrier
    """)
    for pw in range(4):
        for i in range(4):
            r=96+16*pw+4*i
            a(f"ds_read_b128 v[{r}:{r+3}], v4 offset:{pw*17408+16*i}")
        if pw==2: a("s_waitcnt lgkmcnt(4)")
    a("s_waitcnt vmcnt(0)")
    for e in range(16):
        a(f"v_accvgpr_read_b32 v{80+e}, a{208+e}")
    for e in range(16):
        a(f"v_lshlrev_b32 v{80+e}, 16, v{80+e}")
    a("s_waitcnt lgkmcnt(0)")
    for e in range(16):
        a(f"v_add_f32 v{96+e}, v{96+e}, v{112+e}")
        a(f"v_add_f32 v{128+e}, v{128+e}, v{144+e}")
        a(f"v_add_f32 v{96+e}, v{96+e}, v{80+e}")
        a(f"v_add_f32 v{96+e}, v{96+e}, v{128+e}")
    for j in range(8):
        a(f"v_cvt_pk_bf16_f32 v{16+j}, v{96+2*j}, v{97+2*j}")
    a(f"buffer_store_dwordx4 v[16:19], v6, s[{SRD_A}:{SRD_A+3}], s{T1} offen")
    a(f"buffer_store_dwordx4 v[20:23], v6, s[{SRD_A}:{SRD_A+3}], s{T1} offen offset:16")

def rest(a,cfg):
    st=lambda n: stamp(a,cfg,n)
    stop=cfg.get('stop','')
    if stop=='A': return
    st('A_done')
    phaseB(a,cfg)
    if stop=='K':
        dumpK(a); a("s_branch L_end"); return
    phaseC_pre(a,cfg)
    st('B_done')
    wait(a,'s1',0,[NWG//8]*8,stride=32)
    st('wait1')
    phaseC_loads(a,cfg)
    phaseC(a,cfg)
    st('sig2')
    stageW2(a,cfg)
    st('stgGU')
    wait2(a,cfg)
    st('wait2')
    phaseD(a,cfg)
    phaseE(a,cfg)

def helper(a,cfg):
    a("L_helper:")
    hs=[0]
    def hst():
        if not cfg.get('stamps'): return
        a("s_memrealtime s[30:31]"); a("s_waitcnt lgkmcnt(0)"); a(f"s_mov_b32 s{78+hs[0]}, s30"); hs[0]+=1
    hst()
    a(f"""
    s_waitcnt lgkmcnt(0)
    s_lshl_b32 s{T0}, s2, 2
    s_add_u32 s{T0}, s{T0}, s{S_WAVE}          ; V
    v_lshrrev_b32 v2, 2, v1
    v_and_b32 v3, 3, v1
    v_mul_u32_u24 v7, 896, v2
    v_lshl_add_u32 v7, v3, 4, v7
    s_mul_i32 s{T5}, s{S_WAVE}, 40960
    s_lshr_b32 s{T1}, s{T0}, 4                 ; nt
    s_bfe_u32 s{T2}, s{T0}, 0x20002            ; w2
    s_bfe_u32 s{T3}, s{T0}, 0x10001            ; nt2
    s_and_b32 s{T4}, s{T0}, 1                  ; half
    s_mul_i32 s{T6}, s{T2}, 448
    s_mul_i32 s{T7}, s{T4}, 224
    s_add_u32 s{T6}, s{T6}, s{T7}
    s_mul_i32 s{T6}, s{T6}, 896
    s_lshl_b32 s{T7}, s{T1}, 7
    s_add_u32 s{T6}, s{T6}, s{T7}
    s_lshl_b32 s{T7}, s{T3}, 6
    s_add_u32 s{T6}, s{T6}, s{T7}
    """)
    srd(a, SRD_A, P_WD, F*D*2)
    for t in range(14):
        a(f"s_add_u32 s{T7}, s{T6}, {t*16*896}")
        a(f"s_add_u32 m0, s{T5}, {t*1024}")
        a(f"buffer_load_dwordx4 v7, s[{SRD_A}:{SRD_A+3}], s{T7} offen lds")
    a(f"""
    v_lshrrev_b32 v3, 4, v1                    ; G
    v_and_b32 v4, 15, v1                       ; i16
    v_lshrrev_b32 v8, 2, v4                    ; r
    v_lshrrev_b32 v9, 1, v3                    ; hh
    v_and_b32 v10, 1, v3
    v_lshlrev_b32 v10, 5, v10
    v_and_b32 v11, 3, v4
    v_lshl_add_u32 v10, v11, 3, v10            ; 32(G&1) + 8(i16&3)
    v_add_u32 v10, s{T5}, v10
    v_lshl_add_u32 v11, v9, 2, v8              ; 4hh + r
    v_lshl_add_u32 v13, v11, 6, v10
    v_lshlrev_b32 v14, 4, v1
    s_lshl_b32 s{T6}, s{T1}, 2
    s_add_u32 s{T6}, s{T6}, s{T2}
    s_mul_i32 s{T6}, s{T6}, 56
    s_mul_i32 s{T7}, s{T4}, 28
    s_add_u32 s{T6}, s{T6}, s{T7}
    s_add_u32 s{T6}, s{T6}, s{T3}
    s_lshl_b32 s{T6}, s{T6}, 10
    s_add_u32 s{T6}, s{T6}, {WS_WD}
    """)
    srd(a, SRD_B, P_WS, WS_SIZE)
    a("s_waitcnt vmcnt(0)")
    hst()
    for t in range(14):
        r=16+4*t
        a(f"ds_read_b64_tr_b16 v[{r}:{r+1}], v13 offset:{t*1024}")
        a(f"ds_read_b64_tr_b16 v[{r+2}:{r+3}], v13 offset:{t*1024+512}")
        if t in (5,10): a("s_waitcnt lgkmcnt(4)")
    a("s_waitcnt lgkmcnt(0)")
    for t in range(14):
        r=16+4*t
        a(f"s_add_u32 s{T1}, s{T6}, {t*2048}")
        a(f"buffer_store_dwordx4 v[{r}:{r+3}], v14, s[{SRD_B}:{SRD_B+3}], s{T1} offen sc1")
    a("s_waitcnt vmcnt(0)")
    a("s_barrier")
    hst()
    a(f"s_cmp_eq_u32 s{S_WAVE}, 0")
    a("s_cbranch_scc0 L_end")
    a(f"""
    s_mov_b64 exec, 1
    v_mov_b32 v2, 16
    v_mov_b32 v3, 1
    global_atomic_add v2, v3, s[{P_DBG}:{P_DBG+1}]
    s_waitcnt vmcnt(0)
    """)
    hst()
    if cfg.get('stamps'):
        srd(a, SRD_D, P_WS, WS_SIZE)
        a(f"s_add_u32 s{T0}, s2, 224")
        a(f"s_lshl_b32 s{T0}, s{T0}, 2")
        a(f"s_lshl_b32 s{T0}, s{T0}, 7")
        a(f"s_add_u32 s{T0}, s{T0}, {WS_DBG+0x400000}")
        a("s_mov_b64 exec, 1")
        for i in range(hs[0]):
            a(f"v_mov_b32 v2, s{78+i}")
            a(f"v_mov_b32 v3, {4*i}")
            a(f"buffer_store_dword v2, v3, s[{SRD_D}:{SRD_D+3}], s{T0} offen")
        a("s_waitcnt vmcnt(0)")
```

```python
import sys, os
sys.path.insert(0, os.path.dirname(os.path.abspath(__file__)))
from asmlib import Asm
import numpy as np

KNAME = "sequential_preLN__ssm_conv_s4d__swiglu_ffn__prompt_kernel"
L, D, F, N = 2048, 448, 1792, 256
NWG = 224
NHELP = 28
WS_UREV = 0x000000
WS_XT   = 0x200000
WS_HT   = 0x400000
WS_ACT  = 0x600000
WS_WGU  = 0xE00000
WS_WD   = 0x1180000
WS_SUM  = 0x1320000
WS_FLAG = 0x13A0000
WS_DBG  = 0x1400000
WS_SIZE = 0x2000000
KC_OFF   = 0
KC_CH    = 8448
KC_COPY  = 4224
TP_OFF   = 16896
TF_OFF   = 29184
TF_CH    = 1552
UC_OFF   = 32320
UC_CH    = 24832
UC_COPY  = 6208
KG_OFF   = 81984
KG_WAVE  = 16896
KG_ROW   = 528
PA_U     = UC_OFF
PA_X     = UC_OFF + 10240
PA_ROW   = 160
PC_P     = 0
PC_PW    = 9216
LDS_TOTAL = 163840

S_KARG=0
S_WG=2
SRD_A, SRD_B, SRD_C, SRD_D = 4, 8, 12, 16
P_X, P_LA, P_AI, P_CR, P_CI, P_LDT, P_DS, P_BX = 36,38,40,42,44,46,48,50
P_WG, P_WU, P_WD, P_OUT, P_DBG, P_WS = 52,54,56,58,60,62
S_WAVE, S_XCD, S_K, S_K7, S_KM7 = 64,65,66,67,68
S_LDT, S_DSK = 69, 70
S_ONES = 71
S_POLL = 72
T0,T1,T2,T3,T4,T5,T6,T7 = 20,21,22,23,24,25,26,27

def srd(a, s, ptr, size, add=None):
    if add is None:
        a(f"s_mov_b32 s{s}, s{ptr}")
        a(f"s_and_b32 s{s+1}, s{ptr+1}, 0xffff")
    else:
        a(f"s_add_u32 s{s}, s{ptr}, {add}")
        a(f"s_addc_u32 s{s+1}, s{ptr+1}, 0")
        a(f"s_and_b32 s{s+1}, s{s+1}, 0xffff")
    a(f"s_mov_b32 s{s+2}, {size}")
    a(f"s_mov_b32 s{s+3}, 0x20000")

HI = [0,1,2,3,4,5,6,7,256,258,260,262,512,516,768,772,1024,1280,1536,1792,2048]
def bf16_pos(l):
    x=np.float32(l).view(np.uint32)
    r=((int(x)+0x7FFF+((int(x)>>16)&1))>>16)<<16
    return int(np.uint32(r).view(np.float32))
def tab_index(l):
    if l<0: return 768
    p=bf16_pos(l)
    if p==2048: return 20*32
    lo=(p&255)>>3
    return HI.index(p-8*lo)*32+lo

def prologue(a, cfg):
    a(f"""
    s_cmp_ge_u32 s2, {NWG+NHELP}
    s_cbranch_scc1 L_end
    s_load_dwordx16 s[36:51], s[0:1], 0
    s_load_dwordx8 s[52:59], s[0:1], 64
    s_load_dwordx4 s[60:63], s[0:1], 96
    v_and_b32 v1, 63, v0
    v_lshrrev_b32 v2, 6, v0
    s_nop 0
    v_readfirstlane_b32 s{S_WAVE}, v2
    s_mov_b32 s{S_ONES}, 0x3f803f80
    s_cmp_lt_u32 s2, {NHELP}
    s_cbranch_scc1 L_helper
    s_sub_u32 s2, s2, {NHELP}
    s_and_b32 s{S_XCD}, s2, 7
    s_lshr_b32 s{S_K}, s2, 3
    s_mul_i32 s{S_K7}, s{S_K}, 37
    s_lshr_b32 s{S_K7}, s{S_K7}, 8
    s_mul_i32 s{T0}, s{S_K7}, 7
    s_sub_u32 s{S_KM7}, s{S_K}, s{T0}
    s_waitcnt lgkmcnt(0)
    """)

VA_X=2
VB_PAR=66
VB_IDX=70
def phaseA_loads(a):
    a(f"""
    s_lshl_b32 s{T0}, s{S_XCD}, 2
    s_add_u32 s{T0}, s{T0}, s{S_K7}          ; rbA
    s_mul_i32 s{T1}, s{T0}, 57344
    s_lshl_b32 s{T2}, s{S_KM7}, 7
    s_add_u32 s{T2}, s{T2}, s{T1}            ; + slice
    """)
    srd(a, SRD_A, P_X, 1835008)
    a(f"""
    v_and_b32 v80, 7, v0
    v_lshrrev_b32 v81, 3, v0
    v_mul_u32_u24 v82, 896, v81
    v_lshl_add_u32 v82, v80, 4, v82
    v_add_u32 v83, 28672, v82
    """)
    for p in range(2):
        for i in range(7):
            r=VA_X+28*p+4*i
            a(f"buffer_load_dwordx4 v[{r}:{r+3}], v{82+p}, s[{SRD_A}:{SRD_A+3}], s{T1} offen offset:{128*i}")
    a(f"buffer_load_dwordx4 v[58:61], v82, s[{SRD_A}:{SRD_A+3}], s{T2} offen")
    a(f"buffer_load_dwordx4 v[62:65], v83, s[{SRD_A}:{SRD_A+3}], s{T2} offen")

def phaseB_loads(a):
    a(f"""
    s_lshr_b32 s{T3}, s{S_WAVE}, 1
    s_lshl_b32 s{T4}, s2, 1
    s_add_u32 s{T4}, s{T4}, s{T3}            ; d
    s_lshl_b32 s{T4}, s{T4}, 9
    s_and_b32 s{T5}, s{S_WAVE}, 1
    s_lshl_b32 s{T5}, s{T5}, 8
    s_add_u32 s{T4}, s{T4}, s{T5}
    v_lshl_add_u32 v84, v1, 2, s{T4}
    s_lshl_b32 s{T5}, s2, 2
    s_load_dword s{S_LDT}, s[{P_LDT}:{P_LDT+1}], s{T5}
    s_load_dword s{S_DSK}, s[{P_DS}:{P_DS+1}], s{T5}
    global_load_dword v66, v84, s[{P_LA}:{P_LA+1}]
    global_load_dword v67, v84, s[{P_AI}:{P_AI+1}]
    global_load_dword v68, v84, s[{P_CR}:{P_CR+1}]
    global_load_dword v69, v84, s[{P_CI}:{P_CI+1}]
    s_getpc_b64 s[{T6}:{T7}]
L_pc0:
    s_add_u32 s{T6}, s{T6}, L_idxtab-L_pc0
    s_addc_u32 s{T7}, s{T7}, 0
    v_lshlrev_b32 v85, 5, v0
    global_load_dwordx4 v[70:73], v85, s[{T6}:{T7}]
    global_load_dword v74, v85, s[{T6}:{T7}] offset:16
    """)

def phaseA(a, cfg):
    nb=6+(1 if cfg.get('pf_code') else 0)+(6 if cfg.get('pf_tlb') else 0)
    a(f"""
    v_lshrrev_b32 v86, 3, v0
    v_mul_u32_u24 v86, {KC_COPY}, v86
    v_and_b32 v87, 7, v0
    v_lshl_add_u32 v86, v87, 4, v86
    v_mov_b32 v88, 0
    v_mov_b32 v89, 0
    v_mov_b32 v90, 0
    v_mov_b32 v91, 0
    v_cmp_gt_u32 vcc, 32, v0
    s_and_saveexec_b64 s[28:29], vcc
    s_cbranch_execz L_nozero
    ds_write_b128 v86, v[88:91] offset:{KC_OFF}
L_nozero:
    s_mov_b64 exec, s[28:29]
    """)
    for p in range(2):
        a(f"s_waitcnt vmcnt({nb+2+(7 if p==0 else 0)})")
        s1a,s1b,s2a,s2b = 92+4*p,93+4*p,94+4*p,95+4*p
        a(f"v_mov_b32 v{s1a}, 0\nv_mov_b32 v{s1b}, 0\nv_mov_b32 v{s2a}, 0\nv_mov_b32 v{s2b}, 0")
        for j in range(28):
            r=VA_X+28*p+j
            a(f"v_dot2c_f32_bf16 v{s1a if j%2==0 else s1b}, s{S_ONES}, v{r}")
            a(f"v_dot2c_f32_bf16 v{s2a if j%2==0 else s2b}, v{r}, v{r}")
        a(f"v_add_f32 v{s1a}, v{s1a}, v{s1b}\nv_add_f32 v{s2a}, v{s2a}, v{s2b}")
    for p in range(2):
        s1,s2=92+4*p,94+4*p
        for m in ("quad_perm:[1,0,3,2]","quad_perm:[2,3,0,1]","row_half_mirror"):
            a(f"v_add_f32_dpp v{s1}, v{s1}, v{s1} {m} row_mask:0xf bank_mask:0xf")
            a(f"v_add_f32_dpp v{s2}, v{s2}, v{s2} {m} row_mask:0xf bank_mask:0xf")
    a(f"s_mov_b32 s{T3}, 0x3b124925   ; 1/448")
    a(f"s_mov_b32 s{T4}, 0x3727c5ac   ; 1e-5")
    for p in range(2):
        s1,s2=92+4*p,94+4*p
        a(f"""
        v_mul_f32 v{s1}, s{T3}, v{s1}
        v_mul_f32 v{s2}, s{T3}, v{s2}
        v_fma_f32 v{s2}, -v{s1}, v{s1}, v{s2}
        v_max_f32 v{s2}, 0, v{s2}
        v_add_f32 v{s2}, s{T4}, v{s2}
        v_rsq_f32 v{s2}, v{s2}
        v_mul_f32 v{s1}, v{s1}, v{s2}
        """)
    a(f"s_waitcnt vmcnt({nb})")
    for p in range(2):
        s1,s2=92+4*p,94+4*p
        src=58+4*p; dst=100+4*p
        for j in range(4):
            a(f"""
            v_lshlrev_b32 v108, 16, v{src+j}
            v_and_b32 v109, 0xffff0000, v{src+j}
            v_fma_f32 v108, v108, v{s2}, -v{s1}
            v_fma_f32 v109, v109, v{s2}, -v{s1}
            v_cvt_pk_bf16_f32 v{dst+j}, v108, v109
            """)
    a(f"""
    v_mul_u32_u24 v110, {PA_ROW}, v81
    v_lshl_add_u32 v110, v80, 4, v110          ; X addr (p=0)
    v_sub_u32 v111, 63, v81
    v_mul_u32_u24 v111, {PA_ROW}, v111
    v_lshl_add_u32 v111, v80, 4, v111
    v_subrev_u32 v112, {32*PA_ROW}, v111
    ds_write_b128 v110, v[58:61] offset:{PA_X}
    ds_write_b128 v110, v[62:65] offset:{PA_X+32*PA_ROW}
    ds_write_b128 v111, v[100:103] offset:{PA_U}
    ds_write_b128 v112, v[104:107] offset:{PA_U}
    s_waitcnt lgkmcnt(0)
    s_barrier
    """)
    a(f"""
    v_lshrrev_b32 v113, 4, v1                  ; g
    v_and_b32 v114, 15, v1                     ; i
    v_lshrrev_b32 v115, 2, v114
    v_lshl_add_u32 v115, v113, 3, v115         ; row = 8g + (i>>2)
    v_mul_u32_u24 v115, {PA_ROW}, v115
    v_and_b32 v116, 3, v114
    v_lshl_add_u32 v115, v116, 3, v115
    s_lshl_b32 s{T3}, s{S_WAVE}, 5
    v_add_u32 v115, s{T3}, v115
    """)
    for t,(base) in enumerate((PA_U,PA_X)):
        for pr in range(2):
            r=120+8*t+4*pr
            a(f"ds_read_b64_tr_b16 v[{r}:{r+1}], v115 offset:{base+pr*32*PA_ROW}")
            a(f"ds_read_b64_tr_b16 v[{r+2}:{r+3}], v115 offset:{base+pr*32*PA_ROW+4*PA_ROW}")
    srd(a, SRD_B, P_WS, WS_SIZE)
    a(f"""
    s_lshl_b32 s{T3}, s{S_WAVE}, 4
    v_add_u32 v117, s{T3}, v114
    v_lshlrev_b32 v117, 12, v117
    v_lshl_add_u32 v117, v113, 4, v117          ; (16w+i)*4096 + g*16
    s_lshl_b32 s{T3}, s{S_KM7}, 18              ; cs*64*4096
    s_lshl_b32 s{T4}, s{T0}, 7                  ; rb*128
    s_sub_u32 s{T5}, s{T3}, s{T4}
    s_add_u32 s{T5}, s{T5}, {WS_UREV+3968}
    s_add_u32 s{T6}, s{T3}, s{T4}
    s_add_u32 s{T6}, s{T6}, {WS_XT}
    s_lshl_b32 s{T7}, s2, 8
    s_add_u32 s{T7}, s{T7}, {WS_FLAG}
    s_cmp_lt_u32 s2, 88
    s_cselect_b32 s{T7}, s{T7}, {WS_SIZE}
    v_mov_b32 v118, 0
    v_cmp_eq_u32 vcc, 0, v0
    s_and_saveexec_b64 s[28:29], vcc
    s_cbranch_execz L_noflag
    buffer_store_dword v118, v118, s[{SRD_B}:{SRD_B+3}], s{T7} offen sc1
L_noflag:
    s_mov_b64 exec, s[28:29]
    s_waitcnt lgkmcnt(0)
    buffer_store_dwordx4 v[120:123], v117, s[{SRD_B}:{SRD_B+3}], s{T5} offen sc1
    buffer_store_dwordx4 v[124:127], v117, s[{SRD_B}:{SRD_B+3}], s{T5} offen offset:64 sc1
    buffer_store_dwordx4 v[128:131], v117, s[{SRD_B}:{SRD_B+3}], s{T6} offen sc1
    buffer_store_dwordx4 v[132:135], v117, s[{SRD_B}:{SRD_B+3}], s{T6} offen offset:64 sc1
    """)

def signal(a, name, dbg_off_sgpr=None, dbg_off=0):
    a("s_waitcnt vmcnt(0)")
    a("s_barrier")
    a(f"s_cmp_eq_u32 s{S_WAVE}, 0")
    a(f"s_cbranch_scc0 L_sig_{name}")
    a("s_mov_b64 exec, 1")
    if dbg_off_sgpr is not None: a(f"v_mov_b32 v250, s{dbg_off_sgpr}")
    else: a(f"v_mov_b32 v250, {dbg_off}")
    a("v_mov_b32 v251, 1")
    a(f"global_atomic_add v250, v251, s[{P_DBG}:{P_DBG+1}]")
    a("s_mov_b64 exec, -1")
    a(f"L_sig_{name}:")

def wait(a, name, first_off, expects, off_sgpr=None, vt=250, stride=4):
    ncnt=len(expects)
    a(f"s_cmp_eq_u32 s{S_WAVE}, 0")
    a(f"s_cbranch_scc0 L_wait_{name}_done")
    a(f"v_min_u32 v{vt}, {ncnt-1}, v1")
    a(f"v_mov_b32 v{vt+2}, {expects[-1]}")
    for i in range(ncnt-1):
        if expects[i]==expects[-1]: continue
        a(f"v_cmp_eq_u32 vcc, {i}, v{vt}")
        a(f"v_mov_b32 v{vt+1}, {expects[i]}")
        a(f"v_cndmask_b32 v{vt+2}, v{vt+2}, v{vt+1}, vcc")
    a(f"v_mul_u32_u24 v{vt}, {stride}, v{vt}")
    if off_sgpr is not None: a(f"v_add_u32 v{vt}, s{off_sgpr}, v{vt}")
    a(f"s_mov_b32 s{S_POLL}, 0")
    a(f"L_wait_{name}:")
    a(f"global_load_dword v{vt+1}, v{vt}, s[{P_DBG}:{P_DBG+1}] offset:{first_off} sc1")
    a(f"s_add_u32 s{S_POLL}, s{S_POLL}, 1")
    a("s_waitcnt vmcnt(0)")
    a(f"v_cmp_gt_u32 vcc, v{vt+2}, v{vt+1}")
    a(f"s_cmp_gt_u32 s{S_POLL}, 400000")
    a(f"s_cbranch_scc1 L_wait_{name}_done")
    a(f"s_cbranch_vccnz L_wait_{name}")
    a(f"L_wait_{name}_done:")
    a("s_barrier")

STAMPS=[]
def stamp(a,cfg,name):
    if not cfg.get('stamps'): return
    grp=str(cfg.get('stamps'))
    if '.' in name:
        if name.split('.')[0] not in grp: return
    i=len(STAMPS); STAMPS.append(name)
    assert i<24
    a(f"s_memrealtime s[30:31]")
    a("s_waitcnt lgkmcnt(0)")
    a(f"s_mov_b32 s{78+i}, s30")
def dump_stamps(a,cfg):
    if not cfg.get('stamps'): return
    if cfg.get('dbgstamps'):
        a(f"s_cmp_eq_u32 s2, {cfg['dbgstamps']}")
        a("s_cbranch_scc0 L_end")
        a(f"s_cmp_eq_u32 s{S_WAVE}, 0")
        a("s_cbranch_scc0 L_end")
        a("s_mov_b64 exec, 1")
        for i in range(1,min(len(STAMPS),17)):
            a(f"s_sub_u32 s{T0}, s{78+i}, s78")
            a(f"v_mov_b32 v2, s{T0}")
            a(f"v_mov_b32 v3, {4*(i-1)}")
            a(f"global_store_dword v3, v2, s[{P_DBG}:{P_DBG+1}]")
        a("s_waitcnt vmcnt(0)")
        return
    srd(a, SRD_D, P_WS, WS_SIZE)
    n=len(STAMPS)
    a(f"s_lshl_b32 s{T0}, s2, 2")
    a(f"s_add_u32 s{T0}, s{T0}, s{S_WAVE}")
    a(f"s_lshl_b32 s{T0}, s{T0}, 7")
    a(f"s_add_u32 s{T0}, s{T0}, {WS_DBG+0x400000}")
    a("s_mov_b64 exec, 1")
    for i in range(n):
        a(f"v_mov_b32 v2, s{78+i}")
        a(f"v_mov_b32 v3, {4*i}")
        a(f"buffer_store_dword v2, v3, s[{SRD_D}:{SRD_D+3}], s{T0} offen")
    a("s_waitcnt vmcnt(0)")

def warmup(a,cfg):
    if cfg.get('pf_code'):
        a(f"""
        s_getpc_b64 s[28:29]
L_pc1:
        s_sub_u32 s28, s28, L_pc1-{KNAME}
        s_subb_u32 s29, s29, 0
        s_lshl_b32 s{T0}, s{S_K}, 2
        s_add_u32 s{T0}, s{T0}, s{S_WAVE}
        s_min_u32 s{T0}, s{T0}, {cfg.get('pf_code')-1}
        s_lshl_b32 s{T0}, s{T0}, 10
        v_lshl_add_u32 v200, v1, 4, s{T0}
        global_load_dwordx4 v[204:207], v200, s[28:29]
        """)
    if cfg.get('pf_tlb'):
        a(f"""
        v_and_b32 v201, 15, v1
        v_lshlrev_b32 v201, 21, v201
        global_load_dword v208, v201, s[{P_WS}:{P_WS+1}]
        v_mov_b32 v202, 0
        global_load_dword v209, v202, s[{P_OUT}:{P_OUT+1}]
        global_load_dword v210, v202, s[{P_WG}:{P_WG+1}]
        global_load_dword v211, v202, s[{P_WU}:{P_WU+1}]
        global_load_dword v212, v202, s[{P_WD}:{P_WD+1}]
        global_load_dword v213, v202, s[{P_DBG}:{P_DBG+1}]
        """)

def build(cfg):
    a=Asm()
    prologue(a,cfg)
    stamp(a,cfg,'start')
    phaseA_loads(a)
    phaseB_loads(a)
    warmup(a,cfg)
    phaseA(a,cfg)
    stop=cfg.get('stop','')
    if stop=='A':
        a("s_waitcnt vmcnt(0)")
        a("s_branch L_end")
    import phases2
    phases2.rest(a,cfg)
    stamp(a,cfg,'end')
    dump_stamps(a,cfg)
    a("s_branch L_end")
    phases2.helper(a,cfg)
    a("L_end:")
    a("s_endpgm")
    body=a.finalize()
    tab=[]
    for t in range(256):
        row=[2*tab_index(8*t-1+i) for i in range(9)]+[0]*7
        tab.append(".short "+", ".join(str(x) for x in row))
    hdr=open(os.path.join(os.path.dirname(os.path.abspath(__file__)),"header.txt")).read()
    txt=hdr.replace("@LAUNCH@", f"; @launch grid=({cfg.get('grid',NWG+NHELP)},1,1) block=(256,1,1) lds={LDS_TOTAL}")
    txt+=f""".amdgcn_target "amdgcn-amd-amdhsa--gfx950"
.text
.globl {KNAME}
.p2align 8
.type {KNAME},@function
{KNAME}:
{body}.p2align 6
L_idxtab:
""" + "\n".join(tab) + f"""
.section .rodata,"a"
.p2align 6
.amdhsa_kernel {KNAME}
  .amdhsa_next_free_vgpr 512
  .amdhsa_next_free_sgpr 102
  .amdhsa_accum_offset 256
  .amdhsa_group_segment_fixed_size 0
  .amdhsa_kernarg_size 112
  .amdhsa_user_sgpr_count 2
  .amdhsa_user_sgpr_kernarg_segment_ptr 1
  .amdhsa_system_sgpr_workgroup_id_x 1
.end_amdhsa_kernel
"""
    return txt, a

if __name__=="__main__":
    cfg={}
    out=sys.argv[1]
    for kv in sys.argv[2:]:
        k,v=kv.split('='); cfg[k]=int(v) if v.isdigit() else v
    txt,a=build(cfg)
    open(out,"w").write(txt)
    if STAMPS: open(out+".stamps","w").write(" ".join(STAMPS))
    print(f"wrote {out}: {a.ninstr} instrs, {a.nnops} auto nops, {len(txt)} bytes")
```

```python
import sys, os
sys.path.insert(0, os.path.dirname(os.path.abspath(__file__)))
from asmlib import Asm
import numpy as np

KNAME = "sequential_preLN__ssm_conv_s4d__swiglu_ffn__prompt_kernel"
L, D, F, N = 2048, 448, 1792, 256
NWG = 224
NHELP = 28
WS_UREV = 0x000000
WS_XT   = 0x200000
WS_HT   = 0x400000
WS_ACT  = 0x600000
WS_WGU  = 0xE00000
WS_WD   = 0x1180000
WS_SUM  = 0x1320000
WS_FLAG = 0x13A0000
WS_DBG  = 0x1400000
WS_SIZE = 0x2000000
KC_OFF   = 0
KC_CH    = 8448
KC_COPY  = 4224
TP_OFF   = 16896
TF_OFF   = 29184
TF_CH    = 1552
UC_OFF   = 32320
UC_CH    = 24832
UC_COPY  = 6208
KG_OFF   = 81984
KG_WAVE  = 16896
KG_ROW   = 528
PA_U     = UC_OFF
PA_X     = UC_OFF + 10240
PA_ROW   = 160
PC_P     = 0
PC_PW    = 9216
LDS_TOTAL = 163840

S_KARG=0
S_WG=2
SRD_A, SRD_B, SRD_C, SRD_D = 4, 8, 12, 16
P_X, P_LA, P_AI, P_CR, P_CI, P_LDT, P_DS, P_BX = 36,38,40,42,44,46,48,50
P_WG, P_WU, P_WD, P_OUT, P_DBG, P_WS = 52,54,56,58,60,62
S_WAVE, S_XCD, S_K, S_K7, S_KM7 = 64,65,66,67,68
S_LDT, S_DSK = 69, 70
S_ONES = 71
S_POLL = 72
T0,T1,T2,T3,T4,T5,T6,T7 = 20,21,22,23,24,25,26,27

def srd(a, s, ptr, size, add=None):
    if add is None:
        a(f"s_mov_b32 s{s}, s{ptr}")
        a(f"s_and_b32 s{s+1}, s{ptr+1}, 0xffff")
    else:
        a(f"s_add_u32 s{s}, s{ptr}, {add}")
        a(f"s_addc_u32 s{s+1}, s{ptr+1}, 0")
        a(f"s_and_b32 s{s+1}, s{s+1}, 0xffff")
    a(f"s_mov_b32 s{s+2}, {size}")
    a(f"s_mov_b32 s{s+3}, 0x20000")

HI = [0,1,2,3,4,5,6,7,256,258,260,262,512,516,768,772,1024,1280,1536,1792,2048]
def bf16_pos(l):
    x=np.float32(l).view(np.uint32)
    r=((int(x)+0x7FFF+((int(x)>>16)&1))>>16)<<16
    return int(np.uint32(r).view(np.float32))
def tab_index(l):
    if l<0: return 768
    p=bf16_pos(l)
    if p==2048: return 20*32
    lo=(p&255)>>3
    return HI.index(p-8*lo)*32+lo

def prologue(a, cfg):
    a(f"""
    s_cmp_ge_u32 s2, {NWG+NHELP}
    s_cbranch_scc1 L_end
    s_load_dwordx16 s[36:51], s[0:1], 0
    s_load_dwordx8 s[52:59], s[0:1], 64
    s_load_dwordx4 s[60:63], s[0:1], 96
    v_and_b32 v1, 63, v0
    v_lshrrev_b32 v2, 6, v0
    s_nop 0
    v_readfirstlane_b32 s{S_WAVE}, v2
    s_mov_b32 s{S_ONES}, 0x3f803f80
    s_cmp_lt_u32 s2, {NHELP}
    s_cbranch_scc1 L_helper
    s_sub_u32 s2, s2, {NHELP}
    s_and_b32 s{S_XCD}, s2, 7
    s_lshr_b32 s{S_K}, s2, 3
    s_mul_i32 s{S_K7}, s{S_K}, 37
    s_lshr_b32 s{S_K7}, s{S_K7}, 8
    s_mul_i32 s{T0}, s{S_K7}, 7
    s_sub_u32 s{S_KM7}, s{S_K}, s{T0}
    s_waitcnt lgkmcnt(0)
    """)

VA_X=2
VB_PAR=66
VB_IDX=70
def phaseA_loads(a):
    a(f"""
    s_lshl_b32 s{T0}, s{S_XCD}, 2
    s_add_u32 s{T0}, s{T0}, s{S_K7}          ; rbA
    s_mul_i32 s{T1}, s{T0}, 57344
    s_lshl_b32 s{T2}, s{S_KM7}, 7
    s_add_u32 s{T2}, s{T2}, s{T1}            ; + slice
    """)
    srd(a, SRD_A, P_X, 1835008)
    a(f"""
    v_and_b32 v80, 7, v0
    v_lshrrev_b32 v81, 3, v0
    v_mul_u32_u24 v82, 896, v81
    v_lshl_add_u32 v82, v80, 4, v82
    v_add_u32 v83, 28672, v82
    """)
    for p in range(2):
        for i in range(7):
            r=VA_X+28*p+4*i
            a(f"buffer_load_dwordx4 v[{r}:{r+3}], v{82+p}, s[{SRD_A}:{SRD_A+3}], s{T1} offen offset:{128*i}")
    a(f"buffer_load_dwordx4 v[58:61], v82, s[{SRD_A}:{SRD_A+3}], s{T2} offen")
    a(f"buffer_load_dwordx4 v[62:65], v83, s[{SRD_A}:{SRD_A+3}], s{T2} offen")

def phaseB_loads(a):
    a(f"""
    s_lshr_b32 s{T3}, s{S_WAVE}, 1
    s_lshl_b32 s{T4}, s2, 1
    s_add_u32 s{T4}, s{T4}, s{T3}            ; d
    s_lshl_b32 s{T4}, s{T4}, 9
    s_and_b32 s{T5}, s{S_WAVE}, 1
    s_lshl_b32 s{T5}, s{T5}, 8
    s_add_u32 s{T4}, s{T4}, s{T5}
    v_lshl_add_u32 v84, v1, 2, s{T4}
    s_lshl_b32 s{T5}, s2, 2
    s_load_dword s{S_LDT}, s[{P_LDT}:{P_LDT+1}], s{T5}
    s_load_dword s{S_DSK}, s[{P_DS}:{P_DS+1}], s{T5}
    global_load_dword v66, v84, s[{P_LA}:{P_LA+1}]
    global_load_dword v67, v84, s[{P_AI}:{P_AI+1}]
    global_load_dword v68, v84, s[{P_CR}:{P_CR+1}]
    global_load_dword v69, v84, s[{P_CI}:{P_CI+1}]
    s_getpc_b64 s[{T6}:{T7}]
L_pc0:
    s_add_u32 s{T6}, s{T6}, L_idxtab-L_pc0
    s_addc_u32 s{T7}, s{T7}, 0
    v_lshlrev_b32 v85, 5, v0
    global_load_dwordx4 v[70:73], v85, s[{T6}:{T7}]
    global_load_dword v74, v85, s[{T6}:{T7}] offset:16
    """)

def phaseA(a, cfg):
    nb=6+(1 if cfg.get('pf_code') else 0)+(6 if cfg.get('pf_tlb') else 0)
    a(f"""
    v_lshrrev_b32 v86, 3, v0
    v_mul_u32_u24 v86, {KC_COPY}, v86
    v_and_b32 v87, 7, v0
    v_lshl_add_u32 v86, v87, 4, v86
    v_mov_b32 v88, 0
    v_mov_b32 v89, 0
    v_mov_b32 v90, 0
    v_mov_b32 v91, 0
    v_cmp_gt_u32 vcc, 32, v0
    s_and_saveexec_b64 s[28:29], vcc
    s_cbranch_execz L_nozero
    ds_write_b128 v86, v[88:91] offset:{KC_OFF}
L_nozero:
    s_mov_b64 exec, s[28:29]
    """)
    for p in range(2):
        a(f"s_waitcnt vmcnt({nb+2+(7 if p==0 else 0)})")
        s1a,s1b,s2a,s2b = 92+4*p,93+4*p,94+4*p,95+4*p
        a(f"v_mov_b32 v{s1a}, 0\nv_mov_b32 v{s1b}, 0\nv_mov_b32 v{s2a}, 0\nv_mov_b32 v{s2b}, 0")
        for j in range(28):
            r=VA_X+28*p+j
            a(f"v_dot2c_f32_bf16 v{s1a if j%2==0 else s1b}, s{S_ONES}, v{r}")
            a(f"v_dot2c_f32_bf16 v{s2a if j%2==0 else s2b}, v{r}, v{r}")
        a(f"v_add_f32 v{s1a}, v{s1a}, v{s1b}\nv_add_f32 v{s2a}, v{s2a}, v{s2b}")
    for p in range(2):
        s1,s2=92+4*p,94+4*p
        for m in ("quad_perm:[1,0,3,2]","quad_perm:[2,3,0,1]","row_half_mirror"):
            a(f"v_add_f32_dpp v{s1}, v{s1}, v{s1} {m} row_mask:0xf bank_mask:0xf")
            a(f"v_add_f32_dpp v{s2}, v{s2}, v{s2} {m} row_mask:0xf bank_mask:0xf")
    a(f"s_mov_b32 s{T3}, 0x3b124925   ; 1/448")
    a(f"s_mov_b32 s{T4}, 0x3727c5ac   ; 1e-5")
    for p in range(2):
        s1,s2=92+4*p,94+4*p
        a(f"""
        v_mul_f32 v{s1}, s{T3}, v{s1}
        v_mul_f32 v{s2}, s{T3}, v{s2}
        v_fma_f32 v{s2}, -v{s1}, v{s1}, v{s2}
        v_max_f32 v{s2}, 0, v{s2}
        v_add_f32 v{s2}, s{T4}, v{s2}
        v_rsq_f32 v{s2}, v{s2}
        v_mul_f32 v{s1}, v{s1}, v{s2}
        """)
    a(f"s_waitcnt vmcnt({nb})")
    for p in range(2):
        s1,s2=92+4*p,94+4*p
        src=58+4*p; dst=100+4*p
        for j in range(4):
            a(f"""
            v_lshlrev_b32 v108, 16, v{src+j}
            v_and_b32 v109, 0xffff0000, v{src+j}
            v_fma_f32 v108, v108, v{s2}, -v{s1}
            v_fma_f32 v109, v109, v{s2}, -v{s1}
            v_cvt_pk_bf16_f32 v{dst+j}, v108, v109
            """)
    a(f"""
    v_mul_u32_u24 v110, {PA_ROW}, v81
    v_lshl_add_u32 v110, v80, 4, v110          ; X addr (p=0)
    v_sub_u32 v111, 63, v81
    v_mul_u32_u24 v111, {PA_ROW}, v111
    v_lshl_add_u32 v111, v80, 4, v111
    v_subrev_u32 v112, {32*PA_ROW}, v111
    ds_write_b128 v110, v[58:61] offset:{PA_X}
    ds_write_b128 v110, v[62:65] offset:{PA_X+32*PA_ROW}
    ds_write_b128 v111, v[100:103] offset:{PA_U}
    ds_write_b128 v112, v[104:107] offset:{PA_U}
    s_waitcnt lgkmcnt(0)
    s_barrier
    """)
    a(f"""
    v_lshrrev_b32 v113, 4, v1                  ; g
    v_and_b32 v114, 15, v1                     ; i
    v_lshrrev_b32 v115, 2, v114
    v_lshl_add_u32 v115, v113, 3, v115         ; row = 8g + (i>>2)
    v_mul_u32_u24 v115, {PA_ROW}, v115
    v_and_b32 v116, 3, v114
    v_lshl_add_u32 v115, v116, 3, v115
    s_lshl_b32 s{T3}, s{S_WAVE}, 5
    v_add_u32 v115, s{T3}, v115
    """)
    for t,(base) in enumerate((PA_U,PA_X)):
        for pr in range(2):
            r=120+8*t+4*pr
            a(f"ds_read_b64_tr_b16 v[{r}:{r+1}], v115 offset:{base+pr*32*PA_ROW}")
            a(f"ds_read_b64_tr_b16 v[{r+2}:{r+3}], v115 offset:{base+pr*32*PA_ROW+4*PA_ROW}")
    srd(a, SRD_B, P_WS, WS_SIZE)
    a(f"""
    s_lshl_b32 s{T3}, s{S_WAVE}, 4
    v_add_u32 v117, s{T3}, v114
    v_lshlrev_b32 v117, 12, v117
    v_lshl_add_u32 v117, v113, 4, v117          ; (16w+i)*4096 + g*16
    s_lshl_b32 s{T3}, s{S_KM7}, 18              ; cs*64*4096
    s_lshl_b32 s{T4}, s{T0}, 7                  ; rb*128
    s_sub_u32 s{T5}, s{T3}, s{T4}
    s_add_u32 s{T5}, s{T5}, {WS_UREV+3968}
    s_add_u32 s{T6}, s{T3}, s{T4}
    s_add_u32 s{T6}, s{T6}, {WS_XT}
    s_lshl_b32 s{T7}, s2, 8
    s_add_u32 s{T7}, s{T7}, {WS_FLAG}
    s_cmp_lt_u32 s2, 88
    s_cselect_b32 s{T7}, s{T7}, {WS_SIZE}
    v_mov_b32 v118, 0
    v_cmp_eq_u32 vcc, 0, v0
    s_and_saveexec_b64 s[28:29], vcc
    s_cbranch_execz L_noflag
    buffer_store_dword v118, v118, s[{SRD_B}:{SRD_B+3}], s{T7} offen sc1
L_noflag:
    s_mov_b64 exec, s[28:29]
    s_waitcnt lgkmcnt(0)
    buffer_store_dwordx4 v[120:123], v117, s[{SRD_B}:{SRD_B+3}], s{T5} offen sc1
    buffer_store_dwordx4 v[124:127], v117, s[{SRD_B}:{SRD_B+3}], s{T5} offen offset:64 sc1
    buffer_store_dwordx4 v[128:131], v117, s[{SRD_B}:{SRD_B+3}], s{T6} offen sc1
    buffer_store_dwordx4 v[132:135], v117, s[{SRD_B}:{SRD_B+3}], s{T6} offen offset:64 sc1
    """)

def signal(a, name, dbg_off_sgpr=None, dbg_off=0):
    a("s_waitcnt vmcnt(0)")
    a("s_barrier")
    a(f"s_cmp_eq_u32 s{S_WAVE}, 0")
    a(f"s_cbranch_scc0 L_sig_{name}")
    a("s_mov_b64 exec, 1")
    if dbg_off_sgpr is not None: a(f"v_mov_b32 v250, s{dbg_off_sgpr}")
    else: a(f"v_mov_b32 v250, {dbg_off}")
    a("v_mov_b32 v251, 1")
    a(f"global_atomic_add v250, v251, s[{P_DBG}:{P_DBG+1}]")
    a("s_mov_b64 exec, -1")
    a(f"L_sig_{name}:")

def wait(a, name, first_off, expects, off_sgpr=None, vt=250, stride=4):
    ncnt=len(expects)
    a(f"s_cmp_eq_u32 s{S_WAVE}, 0")
    a(f"s_cbranch_scc0 L_wait_{name}_done")
    a(f"v_min_u32 v{vt}, {ncnt-1}, v1")
    a(f"v_mov_b32 v{vt+2}, {expects[-1]}")
    for i in range(ncnt-1):
        if expects[i]==expects[-1]: continue
        a(f"v_cmp_eq_u32 vcc, {i}, v{vt}")
        a(f"v_mov_b32 v{vt+1}, {expects[i]}")
        a(f"v_cndmask_b32 v{vt+2}, v{vt+2}, v{vt+1}, vcc")
    a(f"v_mul_u32_u24 v{vt}, {stride}, v{vt}")
    if off_sgpr is not None: a(f"v_add_u32 v{vt}, s{off_sgpr}, v{vt}")
    a(f"s_mov_b32 s{S_POLL}, 0")
    a(f"L_wait_{name}:")
    a(f"global_load_dword v{vt+1}, v{vt}, s[{P_DBG}:{P_DBG+1}] offset:{first_off} sc1")
    a(f"s_add_u32 s{S_POLL}, s{S_POLL}, 1")
    a("s_waitcnt vmcnt(0)")
    a(f"v_cmp_gt_u32 vcc, v{vt+2}, v{vt+1}")
    a(f"s_cmp_gt_u32 s{S_POLL}, 400000")
    a(f"s_cbranch_scc1 L_wait_{name}_done")
    a(f"s_cbranch_vccnz L_wait_{name}")
    a(f"L_wait_{name}_done:")
    a("s_barrier")

STAMPS=[]
def stamp(a,cfg,name):
    if not cfg.get('stamps'): return
    grp=str(cfg.get('stamps'))
    if '.' in name:
        if name.split('.')[0] not in grp: return
    i=len(STAMPS); STAMPS.append(name)
    assert i<24
    a(f"s_memrealtime s[30:31]")
    a("s_waitcnt lgkmcnt(0)")
    a(f"s_mov_b32 s{78+i}, s30")
def dump_stamps(a,cfg):
    if not cfg.get('stamps'): return
    if cfg.get('dbgstamps'):
        a(f"s_cmp_eq_u32 s2, {cfg['dbgstamps']}")
        a("s_cbranch_scc0 L_end")
        a(f"s_cmp_eq_u32 s{S_WAVE}, 0")
        a("s_cbranch_scc0 L_end")
        a("s_mov_b64 exec, 1")
        for i in range(1,min(len(STAMPS),17)):
            a(f"s_sub_u32 s{T0}, s{78+i}, s78")
            a(f"v_mov_b32 v2, s{T0}")
            a(f"v_mov_b32 v3, {4*(i-1)}")
            a(f"global_store_dword v3, v2, s[{P_DBG}:{P_DBG+1}]")
        a("s_waitcnt vmcnt(0)")
        return
    srd(a, SRD_D, P_WS, WS_SIZE)
    n=len(STAMPS)
    a(f"s_lshl_b32 s{T0}, s2, 2")
    a(f"s_add_u32 s{T0}, s{T0}, s{S_WAVE}")
    a(f"s_lshl_b32 s{T0}, s{T0}, 7")
    a(f"s_add_u32 s{T0}, s{T0}, {WS_DBG+0x400000}")
    a("s_mov_b64 exec, 1")
    for i in range(n):
        a(f"v_mov_b32 v2, s{78+i}")
        a(f"v_mov_b32 v3, {4*i}")
        a(f"buffer_store_dword v2, v3, s[{SRD_D}:{SRD_D+3}], s{T0} offen")
    a("s_waitcnt vmcnt(0)")

def warmup(a,cfg):
    if cfg.get('pf_code'):
        a(f"""
        s_getpc_b64 s[28:29]
L_pc1:
        s_sub_u32 s28, s28, L_pc1-{KNAME}
        s_subb_u32 s29, s29, 0
        s_lshl_b32 s{T7}, s{S_K}, 2
        s_add_u32 s{T7}, s{T7}, s{S_WAVE}
        s_min_u32 s{T7}, s{T7}, {cfg.get('pf_code')-1}
        s_lshl_b32 s{T7}, s{T7}, 10
        v_lshl_add_u32 v200, v1, 4, s{T7}
        global_load_dwordx4 v[204:207], v200, s[28:29]
        """)
    if cfg.get('pf_tlb'):
        a(f"""
        v_and_b32 v201, 15, v1
        v_lshlrev_b32 v201, 21, v201
        global_load_dword v208, v201, s[{P_WS}:{P_WS+1}]
        v_mov_b32 v202, 0
        global_load_dword v209, v202, s[{P_OUT}:{P_OUT+1}]
        global_load_dword v210, v202, s[{P_WG}:{P_WG+1}]
        global_load_dword v211, v202, s[{P_WU}:{P_WU+1}]
        global_load_dword v212, v202, s[{P_WD}:{P_WD+1}]
        global_load_dword v213, v202, s[{P_DBG}:{P_DBG+1}]
        """)

def build(cfg):
    a=Asm()
    prologue(a,cfg)
    stamp(a,cfg,'start')
    phaseA_loads(a)
    phaseB_loads(a)
    warmup(a,cfg)
    phaseA(a,cfg)
    stop=cfg.get('stop','')
    if stop=='A':
        a("s_waitcnt vmcnt(0)")
        a("s_branch L_end")
    import phases2
    phases2.rest(a,cfg)
    stamp(a,cfg,'end')
    dump_stamps(a,cfg)
    a("s_branch L_end")
    phases2.helper(a,cfg)
    a("L_end:")
    a("s_endpgm")
    body=a.finalize()
    tab=[]
    for t in range(256):
        row=[2*tab_index(8*t-1+i) for i in range(9)]+[0]*7
        tab.append(".short "+", ".join(str(x) for x in row))
    hdr=open(os.path.join(os.path.dirname(os.path.abspath(__file__)),"header.txt")).read()
    txt=hdr.replace("@LAUNCH@", f"; @launch grid=({cfg.get('grid',NWG+NHELP)},1,1) block=(256,1,1) lds={LDS_TOTAL}")
    txt+=f""".amdgcn_target "amdgcn-amd-amdhsa--gfx950"
.text
.globl {KNAME}
.p2align 8
.type {KNAME},@function
{KNAME}:
{body}.p2align 6
L_idxtab:
""" + "\n".join(tab) + f"""
.section .rodata,"a"
.p2align 6
.amdhsa_kernel {KNAME}
  .amdhsa_next_free_vgpr 512
  .amdhsa_next_free_sgpr 102
  .amdhsa_accum_offset 256
  .amdhsa_group_segment_fixed_size 0
  .amdhsa_kernarg_size 112
  .amdhsa_user_sgpr_count 2
  .amdhsa_user_sgpr_kernarg_segment_ptr 1
  .amdhsa_system_sgpr_workgroup_id_x 1
.end_amdhsa_kernel
"""
    return txt, a

if __name__=="__main__":
    cfg={}
    out=sys.argv[1]
    for kv in sys.argv[2:]:
        k,v=kv.split('='); cfg[k]=int(v) if v.isdigit() else v
    txt,a=build(cfg)
    open(out,"w").write(txt)
    if STAMPS: open(out+".stamps","w").write(" ".join(STAMPS))
    print(f"wrote {out}: {a.ninstr} instrs, {a.nnops} auto nops, {len(txt)} bytes")
```

```python
import sys, os
sys.path.insert(0, os.path.dirname(os.path.abspath(__file__)))
from asmlib import Asm
import numpy as np

KNAME = "sequential_preLN__ssm_conv_s4d__swiglu_ffn__prompt_kernel"
L, D, F, N = 2048, 448, 1792, 256
NWG = 224
NHELP = 28
WS_UREV = 0x000000
WS_XT   = 0x200000
WS_HT   = 0x400000
WS_ACT  = 0x600000
WS_WGU  = 0xE00000
WS_WD   = 0x1180000
WS_SUM  = 0x1320000
WS_FLAG = 0x13A0000
WS_DBG  = 0x1400000
WS_SIZE = 0x2000000
KC_OFF   = 0
KC_CH    = 8448
KC_COPY  = 4224
TP_OFF   = 16896
TF_OFF   = 29184
TF_CH    = 1552
UC_OFF   = 32320
UC_CH    = 24832
UC_COPY  = 6208
KG_OFF   = 81984
KG_WAVE  = 16896
KG_ROW   = 528
PA_U     = UC_OFF
PA_X     = UC_OFF + 10240
PA_ROW   = 160
PC_P     = 0
PC_PW    = 9216
LDS_TOTAL = 163840

S_KARG=0
S_WG=2
SRD_A, SRD_B, SRD_C, SRD_D = 4, 8, 12, 16
P_X, P_LA, P_AI, P_CR, P_CI, P_LDT, P_DS, P_BX = 36,38,40,42,44,46,48,50
P_WG, P_WU, P_WD, P_OUT, P_DBG, P_WS = 52,54,56,58,60,62
S_WAVE, S_XCD, S_K, S_K7, S_KM7 = 64,65,66,67,68
S_LDT, S_DSK = 69, 70
S_ONES = 71
S_POLL = 72
T0,T1,T2,T3,T4,T5,T6,T7 = 20,21,22,23,24,25,26,27

def srd(a, s, ptr, size, add=None):
    if add is None:
        a(f"s_mov_b32 s{s}, s{ptr}")
        a(f"s_and_b32 s{s+1}, s{ptr+1}, 0xffff")
    else:
        a(f"s_add_u32 s{s}, s{ptr}, {add}")
        a(f"s_addc_u32 s{s+1}, s{ptr+1}, 0")
        a(f"s_and_b32 s{s+1}, s{s+1}, 0xffff")
    a(f"s_mov_b32 s{s+2}, {size}")
    a(f"s_mov_b32 s{s+3}, 0x20000")

HI = [0,1,2,3,4,5,6,7,256,258,260,262,512,516,768,772,1024,1280,1536,1792,2048]
def bf16_pos(l):
    x=np.float32(l).view(np.uint32)
    r=((int(x)+0x7FFF+((int(x)>>16)&1))>>16)<<16
    return int(np.uint32(r).view(np.float32))
def tab_index(l):
    if l<0: return 768
    p=bf16_pos(l)
    if p==2048: return 20*32
    lo=(p&255)>>3
    return HI.index(p-8*lo)*32+lo

def prologue(a, cfg):
    pf=""
    if cfg.get('pf_code',1):
        pf=f"""
        s_getpc_b64 s[28:29]
L_pc1:
        s_sub_u32 s28, s28, L_pc1-{KNAME}
        s_subb_u32 s29, s29, 0
        s_lshr_b32 s20, s2, 3
        s_lshl_b32 s20, s20, 12
        v_lshl_add_u32 v200, v0, 4, s20
        v_min_u32 v200, L_tabend-{KNAME}-16, v200
        global_load_dwordx4 v[204:207], v200, s[28:29]
        """
    a(f"""
    s_cmp_ge_u32 s2, {NWG+NHELP}
    s_cbranch_scc1 L_end
    @PFCODE@
    s_load_dwordx16 s[36:51], s[0:1], 0
    s_load_dwordx8 s[52:59], s[0:1], 64
    s_load_dwordx4 s[60:63], s[0:1], 96
    v_and_b32 v1, 63, v0
    v_lshrrev_b32 v2, 6, v0
    s_nop 0
    v_readfirstlane_b32 s{S_WAVE}, v2
    s_mov_b32 s{S_ONES}, 0x3f803f80
    s_cmp_lt_u32 s2, {NHELP}
    s_cbranch_scc1 L_helper
    s_sub_u32 s2, s2, {NHELP}
    s_and_b32 s{S_XCD}, s2, 7
    s_lshr_b32 s{S_K}, s2, 3
    s_mul_i32 s{S_K7}, s{S_K}, 37
    s_lshr_b32 s{S_K7}, s{S_K7}, 8
    s_mul_i32 s{T0}, s{S_K7}, 7
    s_sub_u32 s{S_KM7}, s{S_K}, s{T0}
    s_waitcnt lgkmcnt(0)
    """.replace("@PFCODE@",pf))

VA_X=2
VB_PAR=66
VB_IDX=70
def phaseA_loads(a):
    a(f"""
    s_lshl_b32 s{T0}, s{S_XCD}, 2
    s_add_u32 s{T0}, s{T0}, s{S_K7}          ; rbA
    s_mul_i32 s{T1}, s{T0}, 57344
    s_lshl_b32 s{T2}, s{S_KM7}, 7
    s_add_u32 s{T2}, s{T2}, s{T1}            ; + slice
    """)
    srd(a, SRD_A, P_X, 1835008)
    a(f"""
    v_and_b32 v80, 7, v0
    v_lshrrev_b32 v81, 3, v0
    v_mul_u32_u24 v82, 896, v81
    v_lshl_add_u32 v82, v80, 4, v82
    v_add_u32 v83, 28672, v82
    """)
    for p in range(2):
        for i in range(7):
            r=VA_X+28*p+4*i
            a(f"buffer_load_dwordx4 v[{r}:{r+3}], v{82+p}, s[{SRD_A}:{SRD_A+3}], s{T1} offen offset:{128*i}")
    a(f"buffer_load_dwordx4 v[58:61], v82, s[{SRD_A}:{SRD_A+3}], s{T2} offen")
    a(f"buffer_load_dwordx4 v[62:65], v83, s[{SRD_A}:{SRD_A+3}], s{T2} offen")

def phaseB_loads(a):
    a(f"""
    s_lshr_b32 s{T3}, s{S_WAVE}, 1
    s_lshl_b32 s{T4}, s2, 1
    s_add_u32 s{T4}, s{T4}, s{T3}            ; d
    s_lshl_b32 s{T4}, s{T4}, 9
    s_and_b32 s{T5}, s{S_WAVE}, 1
    s_lshl_b32 s{T5}, s{T5}, 8
    s_add_u32 s{T4}, s{T4}, s{T5}
    v_lshl_add_u32 v84, v1, 2, s{T4}
    s_lshl_b32 s{T5}, s2, 2
    s_load_dword s{S_LDT}, s[{P_LDT}:{P_LDT+1}], s{T5}
    s_load_dword s{S_DSK}, s[{P_DS}:{P_DS+1}], s{T5}
    global_load_dword v66, v84, s[{P_LA}:{P_LA+1}]
    global_load_dword v67, v84, s[{P_AI}:{P_AI+1}]
    global_load_dword v68, v84, s[{P_CR}:{P_CR+1}]
    global_load_dword v69, v84, s[{P_CI}:{P_CI+1}]
    s_getpc_b64 s[{T6}:{T7}]
L_pc0:
    s_add_u32 s{T6}, s{T6}, L_idxtab-L_pc0
    s_addc_u32 s{T7}, s{T7}, 0
    v_lshlrev_b32 v85, 5, v0
    global_load_dwordx4 v[70:73], v85, s[{T6}:{T7}]
    global_load_dword v74, v85, s[{T6}:{T7}] offset:16
    """)

def phaseA(a, cfg):
    nb=6+(6 if cfg.get('pf_tlb',1) else 0)
    a(f"""
    v_lshrrev_b32 v86, 3, v0
    v_mul_u32_u24 v86, {KC_COPY}, v86
    v_and_b32 v87, 7, v0
    v_lshl_add_u32 v86, v87, 4, v86
    v_mov_b32 v88, 0
    v_mov_b32 v89, 0
    v_mov_b32 v90, 0
    v_mov_b32 v91, 0
    v_cmp_gt_u32 vcc, 32, v0
    s_and_saveexec_b64 s[28:29], vcc
    s_cbranch_execz L_nozero
    ds_write_b128 v86, v[88:91] offset:{KC_OFF}
L_nozero:
    s_mov_b64 exec, s[28:29]
    """)
    for p in range(2):
        a(f"s_waitcnt vmcnt({nb+2+(7 if p==0 else 0)})")
        s1a,s1b,s2a,s2b = 92+4*p,93+4*p,94+4*p,95+4*p
        a(f"v_mov_b32 v{s1a}, 0\nv_mov_b32 v{s1b}, 0\nv_mov_b32 v{s2a}, 0\nv_mov_b32 v{s2b}, 0")
        for j in range(28):
            r=VA_X+28*p+j
            a(f"v_dot2c_f32_bf16 v{s1a if j%2==0 else s1b}, s{S_ONES}, v{r}")
            a(f"v_dot2c_f32_bf16 v{s2a if j%2==0 else s2b}, v{r}, v{r}")
        a(f"v_add_f32 v{s1a}, v{s1a}, v{s1b}\nv_add_f32 v{s2a}, v{s2a}, v{s2b}")
    for p in range(2):
        s1,s2=92+4*p,94+4*p
        for m in ("quad_perm:[1,0,3,2]","quad_perm:[2,3,0,1]","row_half_mirror"):
            a(f"v_add_f32_dpp v{s1}, v{s1}, v{s1} {m} row_mask:0xf bank_mask:0xf")
            a(f"v_add_f32_dpp v{s2}, v{s2}, v{s2} {m} row_mask:0xf bank_mask:0xf")
    a(f"s_mov_b32 s{T3}, 0x3b124925   ; 1/448")
    a(f"s_mov_b32 s{T4}, 0x3727c5ac   ; 1e-5")
    for p in range(2):
        s1,s2=92+4*p,94+4*p
        a(f"""
        v_mul_f32 v{s1}, s{T3}, v{s1}
        v_mul_f32 v{s2}, s{T3}, v{s2}
        v_fma_f32 v{s2}, -v{s1}, v{s1}, v{s2}
        v_max_f32 v{s2}, 0, v{s2}
        v_add_f32 v{s2}, s{T4}, v{s2}
        v_rsq_f32 v{s2}, v{s2}
        v_mul_f32 v{s1}, v{s1}, v{s2}
        """)
    a(f"s_waitcnt vmcnt({nb})")
    for p in range(2):
        s1,s2=92+4*p,94+4*p
        src=58+4*p; dst=100+4*p
        for j in range(4):
            a(f"""
            v_lshlrev_b32 v108, 16, v{src+j}
            v_and_b32 v109, 0xffff0000, v{src+j}
            v_fma_f32 v108, v108, v{s2}, -v{s1}
            v_fma_f32 v109, v109, v{s2}, -v{s1}
            v_cvt_pk_bf16_f32 v{dst+j}, v108, v109
            """)
    a(f"""
    v_mul_u32_u24 v110, {PA_ROW}, v81
    v_lshl_add_u32 v110, v80, 4, v110          ; X addr (p=0)
    v_sub_u32 v111, 63, v81
    v_mul_u32_u24 v111, {PA_ROW}, v111
    v_lshl_add_u32 v111, v80, 4, v111
    v_subrev_u32 v112, {32*PA_ROW}, v111
    ds_write_b128 v110, v[58:61] offset:{PA_X}
    ds_write_b128 v110, v[62:65] offset:{PA_X+32*PA_ROW}
    ds_write_b128 v111, v[100:103] offset:{PA_U}
    ds_write_b128 v112, v[104:107] offset:{PA_U}
    s_waitcnt lgkmcnt(0)
    s_barrier
    """)
    a(f"""
    v_lshrrev_b32 v113, 4, v1                  ; g
    v_and_b32 v114, 15, v1                     ; i
    v_lshrrev_b32 v115, 2, v114
    v_lshl_add_u32 v115, v113, 3, v115         ; row = 8g + (i>>2)
    v_mul_u32_u24 v115, {PA_ROW}, v115
    v_and_b32 v116, 3, v114
    v_lshl_add_u32 v115, v116, 3, v115
    s_lshl_b32 s{T3}, s{S_WAVE}, 5
    v_add_u32 v115, s{T3}, v115
    """)
    for t,(base) in enumerate((PA_U,PA_X)):
        for pr in range(2):
            r=120+8*t+4*pr
            a(f"ds_read_b64_tr_b16 v[{r}:{r+1}], v115 offset:{base+pr*32*PA_ROW}")
            a(f"ds_read_b64_tr_b16 v[{r+2}:{r+3}], v115 offset:{base+pr*32*PA_ROW+4*PA_ROW}")
    srd(a, SRD_B, P_WS, WS_SIZE)
    a(f"""
    s_lshl_b32 s{T3}, s{S_WAVE}, 4
    v_add_u32 v117, s{T3}, v114
    v_lshlrev_b32 v117, 12, v117
    v_lshl_add_u32 v117, v113, 4, v117          ; (16w+i)*4096 + g*16
    s_lshl_b32 s{T3}, s{S_KM7}, 18              ; cs*64*4096
    s_lshl_b32 s{T4}, s{T0}, 7                  ; rb*128
    s_sub_u32 s{T5}, s{T3}, s{T4}
    s_add_u32 s{T5}, s{T5}, {WS_UREV+3968}
    s_add_u32 s{T6}, s{T3}, s{T4}
    s_add_u32 s{T6}, s{T6}, {WS_XT}
    s_lshl_b32 s{T7}, s2, 8
    s_add_u32 s{T7}, s{T7}, {WS_FLAG}
    s_cmp_lt_u32 s2, 88
    s_cselect_b32 s{T7}, s{T7}, {WS_SIZE}
    v_mov_b32 v118, 0
    v_cmp_eq_u32 vcc, 0, v0
    s_and_saveexec_b64 s[28:29], vcc
    s_cbranch_execz L_noflag
    buffer_store_dword v118, v118, s[{SRD_B}:{SRD_B+3}], s{T7} offen sc1
L_noflag:
    s_mov_b64 exec, s[28:29]
    s_waitcnt lgkmcnt(0)
    buffer_store_dwordx4 v[120:123], v117, s[{SRD_B}:{SRD_B+3}], s{T5} offen sc1
    buffer_store_dwordx4 v[124:127], v117, s[{SRD_B}:{SRD_B+3}], s{T5} offen offset:64 sc1
    buffer_store_dwordx4 v[128:131], v117, s[{SRD_B}:{SRD_B+3}], s{T6} offen sc1
    buffer_store_dwordx4 v[132:135], v117, s[{SRD_B}:{SRD_B+3}], s{T6} offen offset:64 sc1
    """)

def signal(a, name, dbg_off_sgpr=None, dbg_off=0):
    a("s_waitcnt vmcnt(0)")
    a("s_barrier")
    a(f"s_cmp_eq_u32 s{S_WAVE}, 0")
    a(f"s_cbranch_scc0 L_sig_{name}")
    a("s_mov_b64 exec, 1")
    if dbg_off_sgpr is not None: a(f"v_mov_b32 v250, s{dbg_off_sgpr}")
    else: a(f"v_mov_b32 v250, {dbg_off}")
    a("v_mov_b32 v251, 1")
    a(f"global_atomic_add v250, v251, s[{P_DBG}:{P_DBG+1}]")
    a("s_mov_b64 exec, -1")
    a(f"L_sig_{name}:")

def wait(a, name, first_off, expects, off_sgpr=None, vt=250, stride=4):
    ncnt=len(expects)
    a(f"s_cmp_eq_u32 s{S_WAVE}, 0")
    a(f"s_cbranch_scc0 L_wait_{name}_done")
    a(f"v_min_u32 v{vt}, {ncnt-1}, v1")
    a(f"v_mov_b32 v{vt+2}, {expects[-1]}")
    for i in range(ncnt-1):
        if expects[i]==expects[-1]: continue
        a(f"v_cmp_eq_u32 vcc, {i}, v{vt}")
        a(f"v_mov_b32 v{vt+1}, {expects[i]}")
        a(f"v_cndmask_b32 v{vt+2}, v{vt+2}, v{vt+1}, vcc")
    a(f"v_mul_u32_u24 v{vt}, {stride}, v{vt}")
    if off_sgpr is not None: a(f"v_add_u32 v{vt}, s{off_sgpr}, v{vt}")
    a(f"s_mov_b32 s{S_POLL}, 0")
    a(f"L_wait_{name}:")
    a(f"global_load_dword v{vt+1}, v{vt}, s[{P_DBG}:{P_DBG+1}] offset:{first_off} sc1")
    a(f"s_add_u32 s{S_POLL}, s{S_POLL}, 1")
    a("s_waitcnt vmcnt(0)")
    a(f"v_cmp_gt_u32 vcc, v{vt+2}, v{vt+1}")
    a(f"s_cmp_gt_u32 s{S_POLL}, 400000")
    a(f"s_cbranch_scc1 L_wait_{name}_done")
    a(f"s_cbranch_vccnz L_wait_{name}")
    a(f"L_wait_{name}_done:")
    a("s_barrier")

STAMPS=[]
def stamp(a,cfg,name):
    if not cfg.get('stamps'): return
    grp=str(cfg.get('stamps'))
    if '.' in name:
        if name.split('.')[0] not in grp: return
    i=len(STAMPS); STAMPS.append(name)
    assert i<24
    a(f"s_memrealtime s[30:31]")
    a("s_waitcnt lgkmcnt(0)")
    a(f"s_mov_b32 s{78+i}, s30")
def dump_stamps(a,cfg):
    if not cfg.get('stamps'): return
    if cfg.get('dbgstamps'):
        a(f"s_cmp_eq_u32 s2, {cfg['dbgstamps']}")
        a("s_cbranch_scc0 L_end")
        a(f"s_cmp_eq_u32 s{S_WAVE}, 0")
        a("s_cbranch_scc0 L_end")
        a("s_mov_b64 exec, 1")
        for i in range(1,min(len(STAMPS),17)):
            a(f"s_sub_u32 s{T0}, s{78+i}, s78")
            a(f"v_mov_b32 v2, s{T0}")
            a(f"v_mov_b32 v3, {4*(i-1)}")
            a(f"global_store_dword v3, v2, s[{P_DBG}:{P_DBG+1}]")
        a("s_waitcnt vmcnt(0)")
        return
    srd(a, SRD_D, P_WS, WS_SIZE)
    n=len(STAMPS)
    a(f"s_lshl_b32 s{T0}, s2, 2")
    a(f"s_add_u32 s{T0}, s{T0}, s{S_WAVE}")
    a(f"s_lshl_b32 s{T0}, s{T0}, 7")
    a(f"s_add_u32 s{T0}, s{T0}, {WS_DBG+0x400000}")
    a("s_mov_b64 exec, 1")
    for i in range(n):
        a(f"v_mov_b32 v2, s{78+i}")
        a(f"v_mov_b32 v3, {4*i}")
        a(f"buffer_store_dword v2, v3, s[{SRD_D}:{SRD_D+3}], s{T0} offen")
    a("s_waitcnt vmcnt(0)")

def warmup(a,cfg):
    if cfg.get('pf_tlb',1):
        a(f"""
        v_and_b32 v201, 15, v1
        v_lshlrev_b32 v201, 21, v201
        global_load_dword v208, v201, s[{P_WS}:{P_WS+1}]
        v_mov_b32 v202, 0
        global_load_dword v209, v202, s[{P_OUT}:{P_OUT+1}]
        global_load_dword v210, v202, s[{P_WG}:{P_WG+1}]
        global_load_dword v211, v202, s[{P_WU}:{P_WU+1}]
        global_load_dword v212, v202, s[{P_WD}:{P_WD+1}]
        global_load_dword v213, v202, s[{P_DBG}:{P_DBG+1}]
        """)

def build(cfg):
    a=Asm()
    prologue(a,cfg)
    stamp(a,cfg,'start')
    phaseA_loads(a)
    phaseB_loads(a)
    warmup(a,cfg)
    phaseA(a,cfg)
    stop=cfg.get('stop','')
    if stop=='A':
        a("s_waitcnt vmcnt(0)")
        a("s_branch L_end")
    import phases2
    phases2.rest(a,cfg)
    stamp(a,cfg,'end')
    dump_stamps(a,cfg)
    a("s_branch L_end")
    phases2.helper(a,cfg)
    a("L_end:")
    a("s_endpgm")
    body=a.finalize()
    ncode=(a.nbytes_est+8192+4095)//4096-1
    body=body.replace("@NCODE@",str(ncode))
    tab=[]
    for t in range(256):
        row=[2*tab_index(8*t-1+i) for i in range(9)]+[0]*7
        tab.append(".short "+", ".join(str(x) for x in row))
    hdr=open(os.path.join(os.path.dirname(os.path.abspath(__file__)),"header.txt")).read()
    txt=hdr.replace("@LAUNCH@", f"; @launch grid=({cfg.get('grid',NWG+NHELP)},1,1) block=(256,1,1) lds={LDS_TOTAL}")
    txt+=f""".amdgcn_target "amdgcn-amd-amdhsa--gfx950"
.text
.globl {KNAME}
.p2align 8
.type {KNAME},@function
{KNAME}:
{body}.p2align 6
L_idxtab:
""" + "\n".join(tab) + f"""
L_tabend:
.section .rodata,"a"
.p2align 6
.amdhsa_kernel {KNAME}
  .amdhsa_next_free_vgpr 512
  .amdhsa_next_free_sgpr 102
  .amdhsa_accum_offset 256
  .amdhsa_group_segment_fixed_size 0
  .amdhsa_kernarg_size 112
  .amdhsa_user_sgpr_count 2
  .amdhsa_user_sgpr_kernarg_segment_ptr 1
  .amdhsa_system_sgpr_workgroup_id_x 1
.end_amdhsa_kernel
"""
    return txt, a

if __name__=="__main__":
    cfg={}
    out=sys.argv[1]
    for kv in sys.argv[2:]:
        k,v=kv.split('='); cfg[k]=int(v) if v.isdigit() else v
    txt,a=build(cfg)
    open(out,"w").write(txt)
    if STAMPS: open(out+".stamps","w").write(" ".join(STAMPS))
    print(f"wrote {out}: {a.ninstr} instrs, {a.nnops} auto nops, {len(txt)} bytes")
```

```python
from gen import *

LOG2E = 0x3fb8aa3b
INV2PI = 0x3e22f983

def cmul(a, z, p, q):
    a(f"v_pk_mul_f32 v[{z}:{z+1}], v[{p}:{p+1}], v[{q}:{q+1}] op_sel:[0,0] op_sel_hi:[0,1]")
    a(f"v_pk_fma_f32 v[{z}:{z+1}], v[{p}:{p+1}], v[{q}:{q+1}], v[{z}:{z+1}] op_sel:[1,1,0] op_sel_hi:[1,0,1] neg_lo:[0,1,0]")

def cmul2(a, z, p, q):
    for j in range(2):
        o=40*j
        a(f"v_pk_mul_f32 v[{z+o}:{z+o+1}], v[{p+o}:{p+o+1}], v[{q+o}:{q+o+1}] op_sel:[0,0] op_sel_hi:[0,1]")
    for j in range(2):
        o=40*j
        a(f"v_pk_fma_f32 v[{z+o}:{z+o+1}], v[{p+o}:{p+o+1}], v[{q+o}:{q+o+1}], v[{z+o}:{z+o+1}] op_sel:[1,1,0] op_sel_hi:[1,0,1] neg_lo:[0,1,0]")

class Rot:
    def __init__(s,base,n,step): s.base,s.n,s.step,s.i=base,n,step,0
    def next(s):
        r=s.base+s.step*(s.i%s.n); s.i+=1; return r

def phaseB(a, cfg):
    R=80
    AL,BE,E1,E2,E4,W8,E256,X0 = R,R+1,R+2,R+4,R+6,R+8,R+10,R+12
    CA=R+14
    MM=R+22
    CB=R+24
    TT=R+32
    pk=Rot(160,8,2)
    a(f"""
    s_waitcnt lgkmcnt(0)
    s_lshr_b32 s{T3}, s{S_WAVE}, 1
    s_lshl_b32 s{T3}, s{T3}, 4
    s_lshr_b32 s{T4}, s{S_LDT}, s{T3}
    s_lshl_b32 s{T4}, s{T4}, 16
    v_mov_b32 v76, {LOG2E}
    v_mul_f32 v76, s{T4}, v76
    v_exp_f32 v76, v76
    v_cvt_pk_bf16_f32 v76, v76, v76
    v_lshlrev_b32 v76, 16, v76
    v_mul_f32 v77, 0xbfb8aa3b, v76         ; -dt*log2e
    v_mul_f32 v78, {INV2PI}, v76           ; dt/(2pi)
    v_add_f32 v79, v76, v76                ; 2dt
    s_waitcnt vmcnt({6+(6 if cfg.get('pf_tlb',1) else 0)})
    """)
    for j in range(2):
        o=40*j
        un=(lambda d,s: f"v_lshlrev_b32 v{d}, 16, v{s}") if j==0 else (lambda d,s: f"v_and_b32 v{d}, 0xffff0000, v{s}")
        a(un(TT+o,66)); a(un(BE+o,67)); a(un(X0+o,68)); a(un(X0+1+o,69))
        a(f"v_mul_f32 v{TT+o}, {LOG2E}, v{TT+o}")
        a(f"v_exp_f32 v{TT+o}, v{TT+o}")
    a(f"v_cvt_pk_bf16_f32 v{TT+1}, v{TT}, v{TT+40}")
    a(f"v_lshlrev_b32 v{AL}, 16, v{TT+1}")
    a(f"v_and_b32 v{AL+40}, 0xffff0000, v{TT+1}")
    for j in range(2):
        o=40*j
        a(f"""
        v_mul_f32 v{AL+o}, v{AL+o}, v77
        v_mul_f32 v{BE+o}, v{BE+o}, v78
        v_mul_f32 v{X0+o}, v{X0+o}, v79
        v_mul_f32 v{X0+1+o}, v{X0+1+o}, v79
        """)
    for (dst,mul) in ((E1,None),(E256,256.0)):
        for j in range(2):
            o=40*j
            if mul:
                a(f"v_mul_f32 v{TT+o}, 0x43800000, v{AL+o}")
                a(f"v_mul_f32 v{TT+1+o}, 0x43800000, v{BE+o}")
                a(f"v_exp_f32 v{TT+o}, v{TT+o}")
                a(f"v_fract_f32 v{TT+1+o}, v{TT+1+o}")
            else:
                a(f"v_exp_f32 v{TT+o}, v{AL+o}")
                a(f"v_fract_f32 v{TT+1+o}, v{BE+o}")
            a(f"v_cos_f32 v{TT+2+o}, v{TT+1+o}")
            a(f"v_sin_f32 v{TT+3+o}, v{TT+1+o}")
        for j in range(2):
            o=40*j
            a(f"v_mul_f32 v{dst+o}, v{TT+o}, v{TT+2+o}")
            a(f"v_mul_f32 v{dst+1+o}, v{TT+o}, v{TT+3+o}")
    cmul2(a,E2,E1,E1); cmul2(a,E4,E2,E2); cmul2(a,W8,E4,E4)
    stamp(a,cfg,'B.setup')
    a(f"""
    s_mul_i32 s{T3}, s{S_WAVE}, {KG_WAVE}
    s_add_u32 s{T3}, s{T3}, {KG_OFF}
    v_lshl_add_u32 v75, v1, 3, s{T3}
    """)
    def wrow(row, src, neg):
        p=pk.next()
        n='-' if neg else ''
        a(f"v_cvt_pk_bf16_f32 v{p}, v{src}, {n}v{src+1}")
        a(f"v_cvt_pk_bf16_f32 v{p+1}, v{src+40}, {n}v{src+41}")
        a(f"ds_write_b64 v75, v[{p}:{p+1}] offset:{row*KG_ROW}")
    p=pk.next()
    a(f"v_mov_b32 v{p}, 0x3f80\nv_mov_b32 v{p+1}, 0x3f80")
    a(f"ds_write_b64 v75, v[{p}:{p+1}] offset:0")
    cmul2(a,CA+4,W8,W8)
    cmul2(a,CA+6,CA+4,W8)
    cmul2(a,MM,CA+4,CA+4)
    wrow(1,W8,True); wrow(2,CA+4,True); wrow(3,CA+6,True)
    cur=[None,W8,CA+4,CA+6]
    for g in range(1,8):
        dstb = CB if g%2==1 else CA
        for c in range(4):
            dst=dstb+2*c
            if g==1 and c==0:
                wrow(4,MM,True); cur[0]=MM
                continue
            if g==2 and c==0:
                cmul2(a,dst,MM,MM)
            else:
                cmul2(a,dst,cur[c],MM)
            cur[c]=dst
            wrow(4*g+c,dst,True)
    stamp(a,cfg,'B.Y')
    a(f"s_lshl_b32 s{T5}, s{S_XCD}, 5")
    signal(a,'s1',dbg_off_sgpr=T5)
    stamp(a,cfg,'sig1')
    a(f"""
    v_and_b32 v156, 31, v1
    v_mul_u32_u24 v156, {KG_ROW}, v156
    v_lshrrev_b32 v157, 5, v1
    v_lshl_add_u32 v156, v157, 4, v156
    v_add_u32 v156, s{T3}, v156
    s_waitcnt lgkmcnt(0)
    """)
    for s in range(16):
        a(f"ds_read_b128 v[{176+4*s}:{179+4*s}], v156 offset:{32*s}")
        if s==11: a("s_waitcnt lgkmcnt(8)")
    XA=CA; XB=CB
    xs=[X0, CA, CA+2, CA+4, CA+6, CB, CB+2, CB+4]
    cmul2(a,xs[1],X0,E1)
    cmul2(a,xs[2],X0,E2)
    cmul2(a,xs[3],xs[1],E2)
    cmul2(a,xs[4],X0,E4)
    cmul2(a,xs[5],xs[1],E4)
    cmul2(a,xs[6],xs[2],E4)
    cmul2(a,xs[7],xs[3],E4)
    a("s_waitcnt lgkmcnt(0)")
    for i in range(8): wrow(i,xs[i],False)
    x256,x258,x260,x262,x512,x516,x768,x772 = CA,CA+2,CA+4,CA+6,CB,CB+2,CB+4,CB+6
    cmul2(a,x256,X0,E256); wrow(8,x256,False)
    cmul2(a,x512,x256,E256)
    cmul2(a,x258,x256,E2); wrow(9,x258,False)
    cmul2(a,x260,x256,E4); wrow(10,x260,False)
    cmul2(a,x768,x512,E256)
    cmul2(a,x262,x258,E4); wrow(11,x262,False)
    wrow(12,x512,False)
    cmul2(a,x516,x512,E4); wrow(13,x516,False)
    wrow(14,x768,False)
    cmul2(a,x772,x768,E4); wrow(15,x772,False)
    chain=[CA,CA+2,CA+4,CA+6,MM]
    prev=x768
    for i,dst in enumerate(chain):
        cmul2(a,dst,prev,E256); wrow(16+i,dst,False); prev=dst
    a("s_waitcnt lgkmcnt(0)")
    for s in range(16):
        r=2+4*s
        a(f"ds_read_b128 v[{r}:{r+3}], v156 offset:{32*s}")
        if s==11: a("s_waitcnt lgkmcnt(8)")
    for s in range(16):
        if s==4: a("s_waitcnt lgkmcnt(4)")
        if s==0: a("s_waitcnt lgkmcnt(12)") if False else None
        if s==12: a("s_waitcnt lgkmcnt(0)")
        r=2+4*s
        c = "0" if s==0 else "a[0:15]"
        if s==8: a("s_waitcnt lgkmcnt(0)")
        a(f"v_mfma_f32_32x32x16_bf16 a[0:15], v[{r}:{r+3}], v[{176+4*s}:{179+4*s}], {c}")
    stamp(a,cfg,'B.mfma')
    a(f"""
    s_mul_i32 s{T3}, s{S_WAVE}, 3072
    s_add_u32 s{T3}, s{T3}, {TP_OFF}
    v_and_b32 v76, 31, v1
    v_lshlrev_b32 v76, 2, v76
    v_lshrrev_b32 v77, 5, v1
    v_lshl_add_u32 v76, v77, 9, v76
    v_add_u32 v76, s{T3}, v76
    """)
    for v in range(12):
        a(f"ds_write_b32 v76, a{v} offset:{(8*(v>>2)+(v&3))*128}")
    a("s_waitcnt lgkmcnt(0)")
    a("s_barrier")
    a(f"""
    v_lshlrev_b32 v76, 3, v0
    v_lshrrev_b32 v77, 7, v0
    v_and_b32 v78, 127, v0
    v_add_u32 v78, 256, v78
    v_mul_u32_u24 v79, 6144, v77
    v_lshl_add_u32 v79, v78, 3, v79
    v_mul_u32_u24 v80, {TF_CH}, v77
    v_lshl_add_u32 v80, v78, 2, v80
    v_lshlrev_b32 v81, 2, v0
    ds_read_b64 v[82:83], v76 offset:{TP_OFF}
    ds_read_b64 v[84:85], v76 offset:{TP_OFF+3072}
    ds_read_b64 v[86:87], v76 offset:{TP_OFF+6144}
    ds_read_b64 v[88:89], v76 offset:{TP_OFF+9216}
    ds_read_b64 v[90:91], v79 offset:{TP_OFF}
    ds_read_b64 v[92:93], v79 offset:{TP_OFF+3072}
    v_and_b32 v94, 1, v0
    v_mul_u32_u24 v94, {TF_CH}, v94
    v_mov_b32 v95, 0
    ds_write_b32 v94, v95 offset:{TF_OFF+1536}
    s_waitcnt lgkmcnt(0)
    v_add_f32 v82, v82, v84
    v_add_f32 v83, v83, v85
    v_add_f32 v86, v86, v88
    v_add_f32 v87, v87, v89
    v_add_f32 v90, v90, v92
    v_add_f32 v91, v91, v93
    v_cvt_pk_bf16_f32 v82, v82, v83
    v_cvt_pk_bf16_f32 v86, v86, v87
    v_cvt_pk_bf16_f32 v90, v90, v91
    ds_write_b32 v81, v82 offset:{TF_OFF}
    ds_write_b32 v81, v86 offset:{TF_OFF+TF_CH}
    ds_write_b32 v80, v90 offset:{TF_OFF}
    s_waitcnt lgkmcnt(0)
    s_barrier
    """)
    for i in range(9):
        src=70+(i>>1)
        a(f"v_and_b32 v{76+i}, 0xffff, v{src}" if i%2==0 else f"v_lshrrev_b32 v{76+i}, 16, v{src}")
    for ch in range(2):
        d=86+10*ch
        for i in range(9):
            a(f"ds_read_u16 v{d+i}, v{76+i} offset:{TF_OFF+ch*TF_CH}")
        if ch==0: a("s_waitcnt lgkmcnt(4)")
    a(f"v_lshlrev_b32 v85, 4, v0")
    for ch in range(2):
        d=86+10*ch
        a(f"s_waitcnt lgkmcnt({9 if ch==0 else 2})")
        e=108+8*ch
        for j in range(4):
            a(f"v_lshl_or_b32 v{e+j}, v{d+2*j+1}, 16, v{d+2*j}")
            a(f"v_lshl_or_b32 v{e+4+j}, v{d+2*j+2}, 16, v{d+2*j+1}")
        a(f"ds_write_b128 v85, v[{e}:{e+3}] offset:{KC_OFF+ch*KC_CH+7*16}")
        a(f"ds_write_b128 v85, v[{e+4}:{e+7}] offset:{KC_OFF+ch*KC_CH+KC_COPY+7*16}")

def dumpK(a):
    a("s_waitcnt lgkmcnt(0)")
    a("s_barrier")
    srd(a, SRD_B, P_WS, WS_SIZE)
    a(f"s_mul_i32 s{T3}, s2, 16896")
    a(f"s_add_u32 s{T3}, s{T3}, {WS_DBG}")
    for m in range(5):
        a(f"v_add_u32 v76, {256*m}, v0")
        a(f"v_lshlrev_b32 v76, 4, v76")
        a(f"v_cmp_gt_u32 vcc, 16896, v76")
        a(f"s_and_saveexec_b64 s[28:29], vcc")
        a(f"s_cbranch_execz L_dk{m}")
        a(f"ds_read_b128 v[80:83], v76 offset:{KC_OFF}")
        a("s_waitcnt lgkmcnt(0)")
        a(f"buffer_store_dwordx4 v[80:83], v76, s[{SRD_B}:{SRD_B+3}], s{T3} offen")
        a(f"L_dk{m}:")
        a("s_mov_b64 exec, s[28:29]")
    a("s_waitcnt vmcnt(0)")


S_RB, S_FS, S_RB2, S_NT, S_WCOL = 73, 74, 75, 76, 77
S_WDB, S_ROW = 34, 35
STAT_OFF = 114688
V_SG, V_SU, V_ONE = 192, 208, 224
FL_S2, FL_EARLY, FL_LATE = 0, 56*256, 72*256

def ids(a):
    a(f"""
    s_lshr_b32 s{T0}, s{S_XCD}, 1
    s_lshl_b32 s{T0}, s{T0}, 2
    s_add_u32 s{S_RB}, s{T0}, s{S_K7}
    s_and_b32 s{T0}, s{S_XCD}, 1
    s_mul_i32 s{T0}, s{T0}, 7
    s_add_u32 s{S_FS}, s{T0}, s{S_KM7}         ; GEMM1 f slice    fs = 7*(x&1) + k%7
    s_lshl_b32 s{S_RB2}, s{S_XCD}, 2
    s_add_u32 s{S_RB2}, s{S_RB2}, s{S_K7}
    s_mov_b32 s{S_NT}, s{S_KM7}
    s_lshl_b32 s{S_WCOL}, s{S_FS}, 8
    s_lshl_b32 s{T0}, s{S_WAVE}, 6
    s_add_u32 s{S_WCOL}, s{S_WCOL}, s{T0}
    """)

def flag_add(a,name,nl,soff,vt):
    a(f"s_cmp_eq_u32 s{S_WAVE}, 0")
    a(f"s_cbranch_scc0 L_fa_{name}")
    a(f"s_mov_b64 exec, {(1<<nl)-1}")
    a(f"v_lshlrev_b32 v{vt}, 8, v1")
    a(f"v_mov_b32 v{vt+1}, 1")
    a(f"buffer_atomic_add v{vt+1}, v{vt}, s[{SRD_B}:{SRD_B+3}], s{soff} offen")
    a("s_mov_b64 exec, -1")
    a(f"L_fa_{name}:")

def flag_poll_issue(a,vt,soff):
    a(f"buffer_load_dword v{vt+1}, v{vt}, s[{SRD_B}:{SRD_B+3}], s{soff} offen sc1")

def flag_wait(a,name,expect,vt,soff,first_issued=False,nnewer=0):
    a(f"s_mov_b32 s{S_POLL}, 0")
    if first_issued:
        a(f"s_waitcnt vmcnt({nnewer})")
        a(f"v_cmp_gt_u32 vcc, {expect}, v{vt+1}")
        a(f"s_cbranch_vccz L_fw_{name}_done")
    a(f"L_fw_{name}:")
    flag_poll_issue(a,vt,soff)
    a(f"s_add_u32 s{S_POLL}, s{S_POLL}, 1")
    a("s_waitcnt vmcnt(0)")
    a(f"v_cmp_gt_u32 vcc, {expect}, v{vt+1}")
    a(f"s_cmp_gt_u32 s{S_POLL}, 400000")
    a(f"s_cbranch_scc1 L_fw_{name}_done")
    a(f"s_cbranch_vccnz L_fw_{name}")
    a(f"L_fw_{name}_done:")

def phaseC_pre(a,cfg):
    for i in range(6):
        a(f"""
        v_add_u32 v16, {64*i}, v1
        v_mul_u32_u24 v17, 6554, v16
        v_lshrrev_b32 v17, 16, v17            ; block = U/10
        v_mul_u32_u24 v18, 10, v17
        v_sub_u32 v18, v16, v18               ; r
        v_lshl_add_u32 v19, v17, 3, v18       ; J
        v_lshlrev_b32 v19, 4, v19
        v_cmp_gt_u32 vcc, 8, v18
        v_mov_b32 v20, 0x10000
        v_cndmask_b32 v{184+i}, v20, v19, vcc
        """)
    ids(a)
    a(f"""
    s_lshr_b32 s{T0}, s{S_WAVE}, 1            ; ch
    s_and_b32 s{T1}, s{S_WAVE}, 1             ; h2
    v_and_b32 v2, 15, v1                      ; r / col
    v_lshrrev_b32 v3, 4, v1                   ; q
    v_and_b32 v4, 1, v2
    v_mul_u32_u24 v4, {KC_COPY}, v4
    v_lshrrev_b32 v5, 1, v2
    v_add_u32 v5, v5, v3
    v_lshl_add_u32 v10, v5, 4, v4
    s_mul_i32 s{T2}, s{T0}, {KC_CH}
    s_lshl_b32 s{T3}, s{T1}, 8
    s_add_u32 s{T2}, s{T2}, s{T3}
    s_add_u32 s{T2}, s{T2}, {KC_OFF}
    v_add_u32 v10, s{T2}, v10
    v_and_b32 v4, 3, v2                       ; b
    v_mul_u32_u24 v4, {UC_COPY}, v4
    v_lshrrev_b32 v5, 2, v2                   ; cc
    v_mul_u32_u24 v6, 10, v5
    v_sub_u32 v6, 30, v6
    v_add_u32 v6, v6, v3
    v_lshl_add_u32 v11, v6, 4, v4
    s_mul_i32 s{T2}, s{T0}, {UC_CH}
    s_mul_i32 s{T3}, s{T1}, 320
    s_add_u32 s{T2}, s{T2}, s{T3}
    s_add_u32 s{T2}, s{T2}, {UC_OFF}
    v_add_u32 v11, s{T2}, v11
    v_and_b32 v4, 3, v2
    v_lshlrev_b32 v4, 3, v4                   ; 2b*4
    v_lshl_add_u32 v4, v3, 6, v4              ; +16q*4
    v_mul_u32_u24 v6, 288, v5                 ; cc*(256+32)
    v_add_u32 v4, v4, v6
    s_mul_i32 s{T2}, s{S_WAVE}, {PC_PW}
    s_add_u32 s{T2}, s{T2}, {PC_P}
    v_add_u32 v12, s{T2}, v4
    v_lshlrev_b32 v9, 4, v0
    v_lshrrev_b32 v2, 2, v1
    v_mul_u32_u24 v7, 3584, v2
    v_and_b32 v3, 3, v1
    v_lshl_add_u32 v7, v3, 4, v7
    v_lshrrev_b32 v3, 4, v1                   ; G
    v_and_b32 v4, 15, v1                      ; i16
    v_lshrrev_b32 v5, 1, v3
    v_lshlrev_b32 v5, 3, v5
    v_lshrrev_b32 v6, 2, v4
    v_add_u32 v5, v5, v6
    v_lshlrev_b32 v5, 6, v5                   ; row*64
    v_and_b32 v6, 1, v3
    v_lshl_add_u32 v5, v6, 5, v5
    v_and_b32 v6, 3, v4
    v_lshl_add_u32 v8, v6, 3, v5
    s_mul_i32 s33, s{S_WAVE}, {18*1024}
    s_add_u32 s33, s33, {KG_OFF}
    v_add_u32 v8, s33, v8
    """)
    srd(a, SRD_B, P_WS, WS_SIZE)
    srd(a, SRD_C, P_WG, D*F*2)
    srd(a, SRD_D, P_WU, D*F*2)

def phaseC_loads(a,cfg):
    a(f"""
    s_lshr_b32 s{T0}, s{S_WAVE}, 1            ; ch
    s_lshl_b32 s{T1}, s2, 1
    s_add_u32 s{T1}, s{T1}, s{T0}             ; d
    s_lshl_b32 s{T1}, s{T1}, 12               ; d*4096
    s_and_b32 s{T2}, s{S_WAVE}, 1
    s_lshl_b32 s{T2}, s{T2}, 1                ; b0 = 2*(w&1)
    s_mul_i32 s{T3}, s{T0}, {UC_CH}
    s_add_u32 s{T3}, s{T3}, {UC_OFF}
    """)
    for bb in range(2):
        a(f"""
        s_add_u32 s{T4}, s{T2}, {bb}
        s_lshl_b32 s{T5}, s{T4}, 2
        s_sub_u32 s{T5}, 12, s{T5}            ; 12-4b
        s_add_u32 s{T6}, s{T1}, s{T5}
        s_add_u32 s{SRD_A}, s{P_WS}, s{T6}
        s_addc_u32 s{SRD_A+1}, s{P_WS+1}, 0
        s_and_b32 s{SRD_A+1}, s{SRD_A+1}, 0xffff
        s_sub_u32 s{SRD_A+2}, 4096, s{T5}
        s_mov_b32 s{SRD_A+3}, 0x20000
        s_mul_i32 s{T4}, s{T4}, {UC_COPY}
        s_add_u32 s{T4}, s{T4}, s{T3}
        """)
        for i in range(6):
            a(f"s_add_u32 m0, s{T4}, {1024*i}")
            a(f"buffer_load_dwordx4 v{184+i}, s[{SRD_A}:{SRD_A+3}], 0 offen sc1 lds")
    a(f"""
    s_lshl_b32 s{T5}, s2, 13
    s_add_u32 s{T5}, s{T5}, {WS_XT}
    buffer_load_dwordx4 v[176:179], v9, s[{SRD_B}:{SRD_B+3}], s{T5} offen sc1
    s_add_u32 s{T5}, s{T5}, 4096
    buffer_load_dwordx4 v[180:183], v9, s[{SRD_B}:{SRD_B+3}], s{T5} offen sc1
    """)

NS_W = 18
W1_OFF, W1_WAVE = KG_OFF, NS_W*1024
S_WL = 33

class VM:
    def __init__(s): s.n=0
    def add(s): s.n+=1; return s.n-1
    def after(s,k): return s.n-1-k

class WStage:
    def __init__(s,a,vm): s.a=a; s.vm=vm; s.d=0; s.t=0; s.pos={}; s.sm=0
    def dma_ins(s):
        i=s.d; s.d+=1
        out=[]
        if i%2==0: out.append(f"s_add_u32 s{T7}, s{S_WCOL}, {(i>>1)*57344}")
        out.append(f"s_add_u32 m0, s{S_WL}, {(i%NS_W)*1024}")
        sd=SRD_C if i%2==0 else SRD_D
        out.append((f"buffer_load_dwordx4 v7, s[{sd}:{sd+3}], s{T7} offen lds", i))
        return out
    def emit(s,x):
        if isinstance(x,tuple):
            s.a(x[0]); s.pos[x[1]]=s.vm.add()
        else: s.a(x)
    def dma(s,n=1):
        for _ in range(n):
            if s.d<56:
                for x in s.dma_ins(): s.emit(x)
    def tr(s,n=1):
        for _ in range(n):
            if s.t>=56: return
            i=s.t; s.t+=1
            s.a(f"s_waitcnt vmcnt({min(63,s.vm.after(s.pos[i]))})")
            s.a(f"ds_read_b64_tr_b16 a[{4*i}:{4*i+1}], v8 offset:{(i%NS_W)*1024}")
            s.a(f"ds_read_b64_tr_b16 a[{4*i+2}:{4*i+3}], v8 offset:{(i%NS_W)*1024+256}")
    def smfma(s,upto):
        while s.sm<upto:
            i=s.sm; s.sm+=1
            dst=V_SG if i%2==0 else V_SU
            c="0" if i<2 else f"v[{dst}:{dst+15}]"
            s.a(f"v_mfma_f32_32x32x16_bf16 v[{dst}:{dst+15}], a[{4*i}:{4*i+3}], v[{V_ONE}:{V_ONE+3}], {c}")

def phaseC(a,cfg,vm,ws):
    AS=[16,80]; BS=[48,112]; ACC=144
    ws.dma(6)
    a(f"s_waitcnt vmcnt(6) lgkmcnt(0)")
    a("s_barrier")
    stamp(a,cfg,'C.dma')
    def reads(c):
        st=c&1; out=[]
        for j in range(8):
            out.append(f"ds_read_b128 v[{BS[st]+4*j}:{BS[st]+4*j+3}], v11 offset:{(40*(7-j)+4*c+2*(c>>1))*16}")
            out.append(f"ds_read_b128 v[{AS[st]+4*j}:{AS[st]+4*j+3}], v10 offset:{512*j+64*c}")
        return out
    r0=reads(0)
    for i,x in enumerate(r0):
        a(x)
        if i==11: a("s_waitcnt lgkmcnt(8)")
    for c in range(4):
        st=c&1
        nxt=reads(c+1) if c<3 else []
        a("s_waitcnt lgkmcnt(0)")
        n=0
        for sp in range(8):
            for t in range(sp,8):
                cc = "0" if (c==0 and sp==0) else f"v[{ACC+4*t}:{ACC+4*t+3}]"
                a(f"v_mfma_f32_16x16x32_bf16 v[{ACC+4*t}:{ACC+4*t+3}], v[{AS[st]+4*sp}:{AS[st]+4*sp+3}], v[{BS[st]+4*(t-sp)}:{BS[st]+4*(t-sp)+3}], {cc}")
                n+=1
                if n%2==0 and nxt: a(nxt.pop(0))
                if c<2 and n%6==3: ws.dma()
                if c==2 and n%4==1 and ws.t<9: ws.tr()
                if c==3:
                    if n%4==1 and ws.d<27: ws.dma()
                    if n%4==3 and ws.t<18: ws.tr()
    assert ws.d==27 and ws.t==18, (ws.d,ws.t)
    stamp(a,cfg,'C.main')
    a("s_barrier")
    for t in range(8):
        a(f"ds_write_b64 v12, v[{ACC+4*t}:{ACC+4*t+1}] offset:{1152*t}")
        a(f"ds_write_b64 v12, v[{ACC+4*t+2}:{ACC+4*t+3}] offset:{1152*t+32}")
    a(f"""
    v_lshlrev_b32 v13, 5, v0                  ; o*32
    v_lshrrev_b32 v14, 3, v0
    v_lshl_add_u32 v13, v14, 5, v13           ; + (o>>3)*32
    v_sub_u32 v14, 255, v0                    ; J
    v_lshrrev_b32 v15, 3, v14
    v_lshl_add_u32 v14, v15, 1, v14
    v_lshlrev_b32 v14, 4, v14
    v_add_u32 v14, {UC_OFF+3*UC_COPY}, v14
    s_lshl_b32 s{T2}, s{S_DSK}, 16            ; D[ch0]
    s_and_b32 s{T3}, s{S_DSK}, 0xffff0000     ; D[ch1]
    s_lshl_b32 s{T4}, s2, 13
    s_add_u32 s{T4}, s{T4}, {WS_HT}
    s_add_u32 s{T5}, s{T4}, 4096
    s_waitcnt lgkmcnt(0)
    s_barrier
    """)
    for ch in range(2):
        b=16+32*ch
        for hf in range(2):
            for k in range(2):
                a(f"ds_read_b128 v[{b+8*hf+4*k}:{b+8*hf+4*k+3}], v13 offset:{PC_P+(2*ch+hf)*PC_PW+16*k}")
        a(f"ds_read_b128 v[{b+16}:{b+19}], v14 offset:{ch*UC_CH}")
    ws.dma(4)
    kst=None
    for ch in range(2):
        b=16+32*ch; xr=176+4*ch; sd=T2+ch
        a(f"s_waitcnt lgkmcnt({5 if ch==0 else 0})")
        for e in range(8):
            ue=7-e
            a(f"v_add_f32 v{b+e}, v{b+e}, v{b+8+e}")
            a(f"v_lshlrev_b32 v{b+20}, 16, v{xr+(e>>1)}" if e%2==0 else f"v_and_b32 v{b+20}, 0xffff0000, v{xr+(e>>1)}")
            a(f"v_lshlrev_b32 v{b+21}, 16, v{b+16+(ue>>1)}" if ue%2==0 else f"v_and_b32 v{b+21}, 0xffff0000, v{b+16+(ue>>1)}")
            a(f"v_add_f32 v{b+e}, v{b+e}, v{b+20}")
            a(f"v_fma_f32 v{b+e}, v{b+21}, s{sd}, v{b+e}")
            if e in (2,5) and ws.d<35: ws.dma()
        for j in range(4):
            a(f"v_cvt_pk_bf16_f32 v{b+24+j}, v{b+2*j}, v{b+2*j+1}")
        a(f"buffer_store_dwordx4 v[{b+24}:{b+27}], v9, s[{SRD_B}:{SRD_B+3}], s{T4+ch} offen sc1")
        kst=vm.add()
    stamp(a,cfg,'C_done')
    ws.dma(36-ws.d)
    a(f"""
    v_mov_b32 v{V_ONE}, s{S_ONES}
    v_mov_b32 v{V_ONE+1}, s{S_ONES}
    v_mov_b32 v{V_ONE+2}, s{S_ONES}
    v_mov_b32 v{V_ONE+3}, s{S_ONES}
    """)
    for _ in range(9):
        ws.tr()
        if ws.t%4==0: a("s_waitcnt lgkmcnt(6)")
    ws.smfma(9)
    a(f"s_waitcnt vmcnt({vm.after(kst)}) lgkmcnt(0)")
    a("s_barrier")
    a(f"s_lshl_b32 s{T0}, s{S_KM7}, 11")
    a(f"s_add_u32 s{T0}, s{T0}, {WS_FLAG+FL_S2}")
    flag_add(a,'s2',8,T0,2)

def stageW2(a,cfg,vm,ws):
    while ws.t<56:
        nd=min(9,56-ws.d)
        for _ in range(nd):
            ws.dma(); ws.smfma(min(ws.sm+2,ws.t))
        nt=min(9,56-ws.t)
        for k in range(nt):
            ws.tr()
            if k%4==3: a("s_waitcnt lgkmcnt(6)")
        a("s_waitcnt lgkmcnt(0)")
    ws.smfma(56)

def wait2(a,cfg):
    a(f"s_cmp_eq_u32 s{S_WAVE}, 0")
    a("s_cbranch_scc0 L_w2_skip")
    a(f"""
    v_min_u32 v2, 6, v1
    v_lshlrev_b32 v2, 11, v2
    s_lshl_b32 s{T0}, s{S_XCD}, 8
    s_add_u32 s{T0}, s{T0}, {WS_FLAG+FL_S2}
    v_mov_b32 v5, 16
    s_mov_b32 s{S_POLL}, 0
    L_w2:
    buffer_load_dword v3, v2, s[{SRD_B}:{SRD_B+3}], s{T0} offen sc1
    global_load_dword v4, v5, s[{P_DBG}:{P_DBG+1}] sc1
    s_add_u32 s{S_POLL}, s{S_POLL}, 1
    s_waitcnt vmcnt(0)
    v_cmp_gt_u32 s[28:29], {NHELP}, v4
    v_cmp_gt_u32 vcc, 32, v3
    s_cmp_gt_u32 s{S_POLL}, 400000
    s_cbranch_scc1 L_w2_done
    s_or_b64 vcc, vcc, s[28:29]
    s_cbranch_vccnz L_w2
    L_w2_done:
    L_w2_skip:
    s_barrier
    """)

WD_PRE = [('v',140+4*i) for i in range(13)] + [('v',224+4*i) for i in range(8)] + [('a',224+4*i) for i in range(8)] + [('v',96+4*i) for i in range(3)]
def wd_reg(i):
    f,r = WD_PRE[i] if i<32 else ('a',4*(i-32))
    return f"{f}[{r}:{r+3}]"

def phaseD(a,cfg):
    ACC=[16,48]; RING=80; MR=112
    a(f"""
    v_lshrrev_b32 v2, 4, v1
    v_lshlrev_b32 v3, 2, v2
    v_and_b32 v4, 15, v1
    v_xor_b32 v4, v4, v3
    v_lshlrev_b32 v4, 4, v4
    v_lshl_add_u32 v14, v2, 12, v4
    s_lshl_b32 s{T0}, s{S_RB}, 8
    s_lshl_b32 s{T1}, s{S_WAVE}, 14
    s_add_u32 s{T0}, s{T0}, s{T1}
    s_add_u32 s{T0}, s{T0}, {WS_HT}
    s_lshl_b32 s{T1}, s{S_WAVE}, 10
    """)
    def hdma(i):
        return [f"s_add_u32 s{T2}, s{T0}, {i*65536}", f"s_add_u32 m0, s{T1}, {i*4096}",
                f"buffer_load_dwordx4 v14, s[{SRD_B}:{SRD_B+3}], s{T2} offen sc1 lds"]
    for i in range(14):
        for x in hdma(i): a(x)
    a(f"""
    v_lshrrev_b32 v10, 4, v1                   ; G
    v_and_b32 v11, 15, v1                      ; i16
    v_lshrrev_b32 v12, 2, v11                  ; r
    v_lshrrev_b32 v13, 1, v10
    v_lshl_add_u32 v13, v13, 3, v12            ; 8hh + r
    v_lshlrev_b32 v13, 8, v13
    v_and_b32 v15, 1, v10
    v_lshl_add_u32 v13, v15, 5, v13
    v_and_b32 v15, 3, v11
    v_lshl_add_u32 v13, v15, 3, v13
    """)
    for j in range(4):
        a(f"v_xor_b32 v15, {j}, v12")
        a(f"v_lshl_add_u32 v{2+j}, v15, 6, v13")
        a(f"v_add_u32 v{6+j}, 0x10000, v{2+j}")
    a(f"""
    v_xor_b32 v15, s{S_WAVE}, v12
    v_lshl_add_u32 v10, v15, 6, v13
    v_add_u32 v15, 0x10000, v10
    v_lshlrev_b32 v11, 4, v1
    v_mov_b32 v120, 0
    v_mov_b32 v121, 0
    v_mov_b32 v122, 0
    v_mov_b32 v123, 0
    """)
    def rd(ad0,ad1,s_,r):
        ad=ad0 if s_<16 else ad1
        o=4096*(s_%16)
        return [f"ds_read_b64_tr_b16 v[{r}:{r+1}], v{ad} offset:{o}", f"ds_read_b64_tr_b16 v[{r+2}:{r+3}], v{ad} offset:{o+1024}"]
    PR=[140+4*q for q in range(7)]; SR=[168,172,176,180,184,188,96]
    for c in range(4):
        a(f"s_waitcnt vmcnt({7 if c<3 else 0})")
        a("s_barrier")
        rds=[]
        for q,s_ in enumerate(range(7*c,7*c+7)): rds.append(rd(2,6,s_,PR[q]))
        srs=[]
        for q,s_ in enumerate(range(7*c,7*c+7)): srs+=rd(10,15,s_,SR[q])
        for q in range(3):
            for x in rds[q]: a(x)
        g=ACC[0]; u=g+16
        for q,s_ in enumerate(range(7*c,7*c+7)):
            if q+3<7:
                for x in rds[q+3]: a(x)
            nb=2*(min(q+3,6)-q)+ (2*q if False else 0)
            a(f"s_waitcnt lgkmcnt({nb})")
            cg="0" if s_==0 else f"v[{g}:{g+15}]"; cu="0" if s_==0 else f"v[{u}:{u+15}]"
            a(f"v_mfma_f32_32x32x16_bf16 v[{g}:{g+15}], a[{8*s_}:{8*s_+3}], v[{PR[q]}:{PR[q]+3}], {cg}")
            if c<2:
                for x in hdma(7*(c+2)+q): a(x)
            a(f"v_mfma_f32_32x32x16_bf16 v[{u}:{u+15}], a[{8*s_+4}:{8*s_+7}], v[{PR[q]}:{PR[q]+3}], {cu}")
        for x in srs: a(x)
        for q in range(7):
            a(f"s_waitcnt lgkmcnt({2*(6-q)})")
            for e in range(4):
                a(f"v_dot2c_f32_bf16 v{120+(e&1)}, s{S_ONES}, v{SR[q]+e}")
                a(f"v_dot2c_f32_bf16 v{122+(e&1)}, v{SR[q]+e}, v{SR[q]+e}")
    stamp(a,cfg,'D.p0')
    steps=[(j,s_) for j in range(1,4) for s_ in range(28)]
    PF=3
    for k in range(PF):
        j,s_=steps[k]
        for x in rd(2+j,6+j,s_,RING+4*(s_%4)): a(x)
    a(f"""
    s_lshl_b32 s{T0}, s{S_RB}, 2
    s_mul_i32 s{T0}, s{T0}, 112
    s_lshl_b32 s{T1}, s{S_FS}, 3
    s_add_u32 s{T0}, s{T0}, s{T1}
    s_lshl_b32 s{T1}, s{S_WAVE}, 1
    s_add_u32 s{T0}, s{T0}, s{T1}
    s_lshl_b32 s{T0}, s{T0}, 10
    s_add_u32 s{T0}, s{T0}, {WS_ACT}
    s_lshl_b32 s{S_WDB}, s{S_NT}, 2
    s_add_u32 s{S_WDB}, s{S_WDB}, s{S_WAVE}
    s_mul_i32 s{S_WDB}, s{S_WDB}, {56*1024}
    s_add_u32 s{S_WDB}, s{S_WDB}, {WS_WD}
    v_add_f32 v120, v120, v121
    v_add_f32 v122, v122, v123
    v_mov_b32 v121, v120
    v_mov_b32 v123, v122
    v_permlane32_swap_b32 v120, v121
    v_permlane32_swap_b32 v122, v123
    v_add_f32 v120, v120, v121
    v_add_f32 v122, v122, v123
    v_mul_f32 v120, 0x3b124925, v120
    v_mul_f32 v122, 0x3b124925, v122
    v_fma_f32 v122, -v120, v120, v122
    v_max_f32 v122, 0, v122
    v_add_f32 v122, 0x3727c5ac, v122
    v_rsq_f32 v121, v122
    v_and_b32 v122, 31, v1
    v_lshlrev_b32 v122, 3, v122
    v_add_u32 v123, {STAT_OFF}, v122
    s_lshl_b32 s{T1}, s{S_WAVE}, 8
    v_add_u32 v122, s{T1}, v123
    ds_write_b64 v122, v[120:121]
    """)
    vm=VM()
    def wd_load(i):
        out=[]
        if i%4==0: out.append(f"s_add_u32 s{T7}, s{S_WDB}, {i*1024}")
        out.append(f"buffer_load_dwordx4 {wd_reg(i)}, v11, s[{SRD_B}:{SRD_B+3}], s{T7} offen offset:{(i%4)*1024} sc1")
        return out
    def epi(j):
        g=ACC[j&1]; u=g+16; m=MR+2*j; r=m+1
        c=124; r2=125
        L_=[f"v_mul_f32 v{c}, 0xbfb8aa3b, v{r}", f"v_mul_f32 v{r2}, v{r}, v{r}"]
        T=[126,127,128,129]
        for v0 in range(0,16,4):
            vs=range(v0,v0+4)
            L_+=[f"v_fma_f32 v{g+v}, -v{m}, v{V_SG+v}, v{g+v}" for v in vs]
            L_+=[f"v_fma_f32 v{u+v}, -v{m}, v{V_SU+v}, v{u+v}" for v in vs]
            L_+=[f"v_mul_f32 v{T[v%4]}, v{c}, v{g+v}" for v in vs]
            for v in vs:
                L_+=[f"v_exp_f32 v{T[v%4]}, v{T[v%4]}", f"v_mul_f32 v{g+v}, v{g+v}, v{u+v}"]
            for v in vs:
                L_+=[f"v_add_f32 v{T[v%4]}, 1.0, v{T[v%4]}", f"v_mul_f32 v{g+v}, v{g+v}, v{r2}"]
            L_+=[f"v_rcp_f32 v{T[v%4]}, v{T[v%4]}" for v in vs]
            L_+=[f"v_mul_f32 v{g+v}, v{g+v}, v{T[v%4]}" for v in vs]
            o=132+4*((v0>>3)&1)+((v0>>1)&3)
            L_+=[f"v_cvt_pk_bf16_f32 v{o}, v{g+v0}, v{g+v0+1}", f"v_cvt_pk_bf16_f32 v{o+1}, v{g+v0+2}, v{g+v0+3}"]
            if v0 in (4,12):
                o=132+4*((v0>>3)&1)
                L_.append(f"buffer_store_dwordx4 v[{o}:{o+3}], v11, s[{SRD_B}:{SRD_B+3}], s{T2} offen offset:{1024*(v0>>3)} sc1")
        return L_
    def emit(x):
        a(x)
        if x.startswith('buffer_'): return vm.add()
    pend=[]; wdn=0; last_early_store=None
    for n,(j,s_) in enumerate(steps):
        if s_==0 and j>0:
            if j>1: stamp(a,cfg,f'D.p{j-1}')
            if j==1:
                a(f"""
                s_waitcnt lgkmcnt(0)
                s_barrier
                ds_read_b64 v[{MR}:{MR+1}], v123
                ds_read_b64 v[{MR+2}:{MR+3}], v123 offset:256
                ds_read_b64 v[{MR+4}:{MR+5}], v123 offset:512
                ds_read_b64 v[{MR+6}:{MR+7}], v123 offset:768
                """)
            a(f"s_add_u32 s{T2}, s{T0}, {(j-1)*112*1024}")
            pend=epi(j-1)
            if cfg.get('x_noepi'): pend=[x for x in pend if x.startswith('buffer_store')]
        if n+PF<len(steps):
            jj,ss=steps[n+PF]
            for x in rd(2+jj,6+jj,ss,RING+4*(ss%4)): a(x)
        newer=2*min(PF,len(steps)-1-n)
        a(f"s_waitcnt lgkmcnt({newer})")
        g=ACC[j&1]; u=g+16; b=RING+4*(s_%4)
        cg="0" if s_==0 else f"v[{g}:{g+15}]"; cu="0" if s_==0 else f"v[{u}:{u+15}]"
        a(f"v_mfma_f32_32x32x16_bf16 v[{g}:{g+15}], a[{8*s_}:{8*s_+3}], v[{b}:{b+3}], {cg}")
        if s_>=1:
            for _ in range(3):
                if pend:
                    x=pend.pop(0); k=emit(x)
                    if x.startswith('buffer_store') and j==2: last_early_store=k
        a(f"v_mfma_f32_32x32x16_bf16 v[{u}:{u+15}], a[{8*s_+4}:{8*s_+7}], v[{b}:{b+3}], {cu}")
        if s_>=1:
            for _ in range(3):
                if pend:
                    x=pend.pop(0); k=emit(x)
                    if x.startswith('buffer_store') and j==2: last_early_store=k
        if j<3 and wdn<32 and n>=1 and ((n-1)*32)//53>=wdn:
            for x in wd_load(wdn): emit(x)
            wdn+=1
        if j==3 and 2<=s_<=25:
            for x in wd_load(32+s_-2): emit(x)
        if s_==27:
            while pend:
                x=pend.pop(0); k=emit(x)
                if x.startswith('buffer_store') and j==2: last_early_store=k
        if j==3 and s_==10:
            a(f"s_waitcnt vmcnt({vm.after(last_early_store)})")
            a("s_barrier")
            a(f"s_lshl_b32 s{T1}, s{S_RB}, 8")
            a(f"s_add_u32 s{T1}, s{T1}, {WS_FLAG+FL_EARLY}")
            flag_add(a,'early',1,T1,130)
    assert wdn==32
    stamp(a,cfg,'D.p3')
    a(f"""
    s_lshr_b32 s{T3}, s{S_RB2}, 1
    s_lshl_b32 s{T3}, s{T3}, 8
    s_add_u32 s{T4}, s{T3}, {WS_FLAG+FL_LATE}
    s_add_u32 s{T3}, s{T3}, {WS_FLAG+FL_EARLY}
    v_mov_b32 v130, 0
    s_cmp_eq_u32 s{S_WAVE}, 0
    s_cbranch_scc0 L_ep_skip
    """)
    flag_poll_issue(a,130,T3)
    a("L_ep_skip:")
    a(f"s_add_u32 s{T2}, s{T0}, {3*112*1024}")
    for x in epi(3): a(x)
    stamp(a,cfg,'D_done')
    a(f"s_cmp_eq_u32 s{S_WAVE}, 0")
    a("s_cbranch_scc0 L_ew_skip")
    flag_wait(a,'early',14,130,T3,first_issued=True,nnewer=2)
    a("L_ew_skip:")
    a("s_barrier")

def phaseE(a,cfg):
    RING=96; ACC=16; HRES=208
    a(f"""
    s_lshr_b32 s{T0}, s{S_RB2}, 1
    s_lshl_b32 s{T0}, s{T0}, 2
    s_and_b32 s{T1}, s{S_RB2}, 1
    s_add_u32 s{T0}, s{T0}, s{T1}
    s_lshl_b32 s{S_ROW}, s{T0}, 5
    s_mul_i32 s{T0}, s{T0}, 112
    s_mul_i32 s{T1}, s{S_WAVE}, 28
    s_add_u32 s{T0}, s{T0}, s{T1}
    s_lshl_b32 s{T0}, s{T0}, 10
    s_add_u32 s{T0}, s{T0}, {WS_ACT}
    """)
    vm=VM(); pos={}
    def ld(t,lt):
        r=RING+4*t
        if t%4==0: a(f"s_add_u32 s{T2+lt*3}, s{T0}, {t*1024+lt*2*112*1024}")
        a(f"buffer_load_dwordx4 a[{r}:{r+3}], v11, s[{SRD_B}:{SRD_B+3}], s{T2+lt*3} offen offset:{(t%4)*1024} sc1")
        pos[(t,lt)]=vm.add()
    AH=cfg.get('e_ahead',14)
    for t in range(8): ld(t,0)
    a("s_waitcnt vmcnt(8)")
    a("s_barrier")
    a(f"s_lshl_b32 s{T1}, s{S_RB}, 8")
    a(f"s_add_u32 s{T1}, s{T1}, {WS_FLAG+FL_LATE}")
    flag_add(a,'late',1,T1,130)
    stamp(a,cfg,'sig3')
    for t in range(8,AH): ld(t,0)
    a(f"""
    v_and_b32 v5, 3, v0
    v_lshlrev_b32 v5, 16, v5
    v_lshrrev_b32 v6, 2, v0
    v_lshrrev_b32 v7, 5, v6
    v_lshl_add_u32 v6, v7, 5, v6
    v_lshl_add_u32 v5, v6, 1, v5
    s_lshl_b32 s{T3}, s{S_NT}, 18
    s_lshl_b32 s{T1}, s{S_ROW}, 1
    s_add_u32 s{T3}, s{T3}, s{T1}
    s_add_u32 s{T3}, s{T3}, {WS_HT}
    v_mov_b32 v130, 0
    """)
    def hres(e):
        a(f"s_add_u32 s{T1}, s{T3}, {e*4096}")
        a(f"buffer_load_ushort a{HRES+e}, v5, s[{SRD_B}:{SRD_B+3}], s{T1} offen sc1")
        vm.add()
    def step(t,lt):
        b=RING+4*t
        for nt2 in range(2):
            d=ACC+16*(2*lt+nt2)
            c="0" if t==0 else f"v[{d}:{d+15}]"
            a(f"v_mfma_f32_32x32x16_bf16 v[{d}:{d+15}], {wd_reg(2*t+nt2)}, a[{b}:{b+3}], {c}")
    TP=cfg.get('e_poll',12); TC=cfg.get('e_chk',20)
    nl=0
    for t in range(28):
        a(f"s_waitcnt vmcnt({vm.after(pos[(t,0)])})")
        step(t,0)
        if t+AH<28: ld(t+AH,0)
        elif t<TC and t-(28-AH)<16 and t>=28-AH: pass
        if t==TP:
            a(f"s_cmp_eq_u32 s{S_WAVE}, 0")
            a("s_cbranch_scc0 L_lp_skip")
            flag_poll_issue(a,130,T4)
            a("L_lp_skip:")
            kpoll=vm.n-1
        if t==TC:
            a(f"s_cmp_eq_u32 s{S_WAVE}, 0")
            a("s_cbranch_scc0 L_lw_skip")
            flag_wait(a,'late',14,130,T4,first_issued=True,nnewer=vm.after(kpoll))
            a("L_lw_skip:")
            a("s_barrier")
            stamp(a,cfg,'wait3')
        if t>=TC:
            for _ in range(2):
                if nl<=t and nl<AH+2: ld(nl,1); nl+=1
    stamp(a,cfg,'E.early')
    while nl<AH: ld(nl,1); nl+=1
    hn=0
    for t in range(28):
        a(f"s_waitcnt vmcnt({vm.after(pos[(t,1)])})")
        step(t,1)
        if nl<28: ld(nl,1); nl+=1
        elif hn<16:
            hres(hn); hres(hn+1); hn+=2
    while hn<16: hres(hn); hn+=1
    stamp(a,cfg,'E.main')
    a(f"""
    v_and_b32 v3, 31, v1
    v_mul_u32_u24 v3, 272, v3
    v_lshrrev_b32 v4, 5, v1
    v_lshl_add_u32 v3, v4, 4, v3
    s_mul_i32 s{T1}, s{S_WAVE}, 17408
    v_add_u32 v3, s{T1}, v3
    v_lshrrev_b32 v4, 2, v0
    v_mul_u32_u24 v4, 272, v4
    v_and_b32 v5, 3, v0
    v_lshl_add_u32 v4, v5, 6, v4
    """)
    for lt in range(2):
        for nt2 in range(2):
            d=ACC+16*(2*lt+nt2)
            for g in range(4):
                a(f"ds_write_b128 v3, v[{d+4*g}:{d+4*g+3}] offset:{lt*8704+nt2*128+g*32}")
    srd(a, SRD_A, P_OUT, L*D*2)
    a(f"""
    v_mul_u32_u24 v6, 896, v6
    v_lshl_add_u32 v6, v5, 5, v6
    s_mul_i32 s{T1}, s{S_ROW}, 896
    s_lshl_b32 s{T2}, s{S_NT}, 7
    s_add_u32 s{T1}, s{T1}, s{T2}
    s_waitcnt lgkmcnt(0)
    s_barrier
    """)
    for pw in range(4):
        for i in range(4):
            r=96+16*pw+4*i
            a(f"ds_read_b128 v[{r}:{r+3}], v4 offset:{pw*17408+16*i}")
        if pw==2: a("s_waitcnt lgkmcnt(4)")
    a("s_waitcnt vmcnt(0)")
    for e in range(16):
        a(f"v_accvgpr_read_b32 v{80+e}, a{208+e}")
    for e in range(16):
        a(f"v_lshlrev_b32 v{80+e}, 16, v{80+e}")
    a("s_waitcnt lgkmcnt(0)")
    for e in range(16):
        a(f"v_add_f32 v{96+e}, v{96+e}, v{112+e}")
        a(f"v_add_f32 v{128+e}, v{128+e}, v{144+e}")
        a(f"v_add_f32 v{96+e}, v{96+e}, v{80+e}")
        a(f"v_add_f32 v{96+e}, v{96+e}, v{128+e}")
    for j in range(8):
        a(f"v_cvt_pk_bf16_f32 v{16+j}, v{96+2*j}, v{97+2*j}")
    a(f"buffer_store_dwordx4 v[16:19], v6, s[{SRD_A}:{SRD_A+3}], s{T1} offen")
    a(f"buffer_store_dwordx4 v[20:23], v6, s[{SRD_A}:{SRD_A+3}], s{T1} offen offset:16")

def rest(a,cfg):
    st=lambda n: stamp(a,cfg,n)
    stop=cfg.get('stop','')
    if stop=='A': return
    st('A_done')
    phaseB(a,cfg)
    if stop=='K':
        dumpK(a); a("s_branch L_end"); return
    phaseC_pre(a,cfg)
    st('B_done')
    wait(a,'s1',0,[NWG//8]*8,stride=32)
    st('wait1')
    phaseC_loads(a,cfg)
    vm=VM(); ws=WStage(a,vm)
    phaseC(a,cfg,vm,ws)
    st('sig2')
    stageW2(a,cfg,vm,ws)
    st('stgGU')
    wait2(a,cfg)
    st('wait2')
    phaseD(a,cfg)
    phaseE(a,cfg)

def helper(a,cfg):
    a("L_helper:")
    hs=[0]
    def hst():
        if not cfg.get('stamps'): return
        a("s_memrealtime s[30:31]"); a("s_waitcnt lgkmcnt(0)"); a(f"s_mov_b32 s{78+hs[0]}, s30"); hs[0]+=1
    hst()
    a(f"""
    s_waitcnt lgkmcnt(0)
    s_lshl_b32 s{T0}, s2, 2
    s_add_u32 s{T0}, s{T0}, s{S_WAVE}          ; V
    v_lshrrev_b32 v2, 2, v1
    v_and_b32 v3, 3, v1
    v_mul_u32_u24 v7, 896, v2
    v_lshl_add_u32 v7, v3, 4, v7
    s_mul_i32 s{T5}, s{S_WAVE}, 40960
    s_lshr_b32 s{T1}, s{T0}, 4                 ; nt
    s_bfe_u32 s{T2}, s{T0}, 0x20002            ; w2
    s_bfe_u32 s{T3}, s{T0}, 0x10001            ; nt2
    s_and_b32 s{T4}, s{T0}, 1                  ; half
    s_mul_i32 s{T6}, s{T2}, 448
    s_mul_i32 s{T7}, s{T4}, 224
    s_add_u32 s{T6}, s{T6}, s{T7}
    s_mul_i32 s{T6}, s{T6}, 896
    s_lshl_b32 s{T7}, s{T1}, 7
    s_add_u32 s{T6}, s{T6}, s{T7}
    s_lshl_b32 s{T7}, s{T3}, 6
    s_add_u32 s{T6}, s{T6}, s{T7}
    """)
    srd(a, SRD_A, P_WD, F*D*2)
    for t in range(14):
        a(f"s_add_u32 s{T7}, s{T6}, {t*16*896}")
        a(f"s_add_u32 m0, s{T5}, {t*1024}")
        a(f"buffer_load_dwordx4 v7, s[{SRD_A}:{SRD_A+3}], s{T7} offen lds")
    a(f"""
    v_lshrrev_b32 v3, 4, v1                    ; G
    v_and_b32 v4, 15, v1                       ; i16
    v_lshrrev_b32 v8, 2, v4                    ; r
    v_lshrrev_b32 v9, 1, v3                    ; hh
    v_and_b32 v10, 1, v3
    v_lshlrev_b32 v10, 5, v10
    v_and_b32 v11, 3, v4
    v_lshl_add_u32 v10, v11, 3, v10            ; 32(G&1) + 8(i16&3)
    v_add_u32 v10, s{T5}, v10
    v_lshl_add_u32 v11, v9, 2, v8              ; 4hh + r
    v_lshl_add_u32 v13, v11, 6, v10
    v_lshlrev_b32 v14, 4, v1
    s_lshl_b32 s{T6}, s{T1}, 2
    s_add_u32 s{T6}, s{T6}, s{T2}
    s_mul_i32 s{T6}, s{T6}, 56
    s_mul_i32 s{T7}, s{T4}, 28
    s_add_u32 s{T6}, s{T6}, s{T7}
    s_add_u32 s{T6}, s{T6}, s{T3}
    s_lshl_b32 s{T6}, s{T6}, 10
    s_add_u32 s{T6}, s{T6}, {WS_WD}
    """)
    srd(a, SRD_B, P_WS, WS_SIZE)
    a("s_waitcnt vmcnt(0)")
    hst()
    for t in range(14):
        r=16+4*t
        a(f"ds_read_b64_tr_b16 v[{r}:{r+1}], v13 offset:{t*1024}")
        a(f"ds_read_b64_tr_b16 v[{r+2}:{r+3}], v13 offset:{t*1024+512}")
        if t in (5,10): a("s_waitcnt lgkmcnt(4)")
    a("s_waitcnt lgkmcnt(0)")
    for t in range(14):
        r=16+4*t
        a(f"s_add_u32 s{T1}, s{T6}, {t*2048}")
        a(f"buffer_store_dwordx4 v[{r}:{r+3}], v14, s[{SRD_B}:{SRD_B+3}], s{T1} offen sc1")
    a("s_waitcnt vmcnt(0)")
    a("s_barrier")
    hst()
    a(f"s_cmp_eq_u32 s{S_WAVE}, 0")
    a("s_cbranch_scc0 L_h_nosig")
    a(f"""
    s_mov_b64 exec, 1
    v_mov_b32 v2, 16
    v_mov_b32 v3, 1
    global_atomic_add v2, v3, s[{P_DBG}:{P_DBG+1}]
    s_mov_b64 exec, -1
    L_h_nosig:
    """)
    hst()
    if cfg.get('pf_w',1):
        a(f"""
        s_lshr_b32 s{T3}, s{S_WAVE}, 1
        s_cmp_eq_u32 s{T3}, 0
        s_cselect_b32 s{SRD_A}, s{P_WG}, s{P_WU}
        s_cselect_b32 s{SRD_A+1}, s{P_WG+1}, s{P_WU+1}
        s_and_b32 s{SRD_A+1}, s{SRD_A+1}, 0xffff
        s_mov_b32 s{SRD_A+2}, {D*F*2}
        s_mov_b32 s{SRD_A+3}, 0x20000
        s_and_b32 s{T0}, s2, 7
        s_cmp_lt_u32 s{T0}, 4
        s_cselect_b32 s{T1}, 4, 3
        s_lshr_b32 s{T2}, s2, 3
        s_and_b32 s{T3}, s2, 1
        s_mul_i32 s{T3}, s{T3}, 1792
        s_and_b32 s{T4}, s{S_WAVE}, 1
        s_mul_i32 s{T4}, s{T4}, 896
        s_add_u32 s{T3}, s{T3}, s{T4}
        v_min_u32 v2, 55, v1
        v_lshlrev_b32 v2, 4, v2
        s_mul_i32 s{T5}, s{T1}, 3584
        s_mul_i32 s{T6}, s{T2}, 3584
        s_add_u32 s{T6}, s{T6}, s{T3}
        L_h_pf:
        """)
        for q in range(4):
            a(f"buffer_load_dwordx4 v[{16+4*q}:{19+4*q}], v2, s[{SRD_A}:{SRD_A+3}], s{T6} offen")
            a(f"s_add_u32 s{T6}, s{T6}, s{T5}")
        a(f"""
        s_waitcnt vmcnt(24)
        s_cmp_lt_u32 s{T6}, {D*F*2}
        s_cbranch_scc1 L_h_pf
        s_waitcnt vmcnt(0)
        """)
    hst()
    a(f"s_cmp_eq_u32 s{S_WAVE}, 0")
    a("s_cbranch_scc0 L_end")
    if cfg.get('stamps'):
        srd(a, SRD_D, P_WS, WS_SIZE)
        a(f"s_add_u32 s{T0}, s2, 224")
        a(f"s_lshl_b32 s{T0}, s{T0}, 2")
        a(f"s_lshl_b32 s{T0}, s{T0}, 7")
        a(f"s_add_u32 s{T0}, s{T0}, {WS_DBG+0x400000}")
        a("s_mov_b64 exec, 1")
        for i in range(hs[0]):
            a(f"v_mov_b32 v2, s{78+i}")
            a(f"v_mov_b32 v3, {4*i}")
            a(f"buffer_store_dword v2, v3, s[{SRD_D}:{SRD_D+3}], s{T0} offen")
        a("s_waitcnt vmcnt(0)")
```

```python
import sys, os
sys.path.insert(0, os.path.dirname(os.path.abspath(__file__)))
from asmlib import Asm
import numpy as np

KNAME = "sequential_preLN__ssm_conv_s4d__swiglu_ffn__prompt_kernel"
L, D, F, N = 2048, 448, 1792, 256
NWG = 224
NHELP = 28
WS_STAT = 0x000000
WS_XT   = 0x200000
WS_HT   = 0x400000
WS_ACT  = 0x600000
WS_WGU  = 0xE00000
WS_WD   = 0x1180000
WS_SUM  = 0x1320000
WS_FLAG = 0x13A0000
WS_DBG  = 0x1400000
WS_SIZE = 0x2000000
KC_OFF   = 0
KC_CH    = 8448
KC_COPY  = 4224
TP_OFF   = 16896
TF_OFF   = 29184
TF_CH    = 1552
UC_OFF   = 32320
UC_CH    = 24832
UC_COPY  = 6208
KG_OFF   = 81984
KG_WAVE  = 16896
KG_ROW   = 528
PA_U     = UC_OFF
PA_X     = 149568
PA_ROW   = 160
PC_P     = 0
PC_PW    = 9216
LDS_TOTAL = 163840

S_KARG=0
S_WG=2
SRD_A, SRD_B, SRD_C, SRD_D = 4, 8, 12, 16
P_X, P_LA, P_AI, P_CR, P_CI, P_LDT, P_DS, P_BX = 36,38,40,42,44,46,48,50
P_WG, P_WU, P_WD, P_OUT, P_DBG, P_WS = 52,54,56,58,60,62
S_WAVE, S_XCD, S_K, S_K7, S_KM7 = 64,65,66,67,68
S_LDT, S_DSK = 69, 70
S_ONES = 71
S_POLL = 72
S_RBA = 31
S_CH = 32
T0,T1,T2,T3,T4,T5,T6,T7 = 20,21,22,23,24,25,26,27

def srd(a, s, ptr, size, add=None):
    if add is None:
        a(f"s_mov_b32 s{s}, s{ptr}")
        a(f"s_and_b32 s{s+1}, s{ptr+1}, 0xffff")
    else:
        a(f"s_add_u32 s{s}, s{ptr}, {add}")
        a(f"s_addc_u32 s{s+1}, s{ptr+1}, 0")
        a(f"s_and_b32 s{s+1}, s{s+1}, 0xffff")
    a(f"s_mov_b32 s{s+2}, {size}")
    a(f"s_mov_b32 s{s+3}, 0x20000")

HI = [0,1,2,3,4,5,6,7,256,258,260,262,512,516,768,772,1024,1280,1536,1792,2048]
def bf16_pos(l):
    x=np.float32(l).view(np.uint32)
    r=((int(x)+0x7FFF+((int(x)>>16)&1))>>16)<<16
    return int(np.uint32(r).view(np.float32))
def tab_index(l):
    if l<0: return 768
    p=bf16_pos(l)
    if p==2048: return 20*32
    lo=(p&255)>>3
    return HI.index(p-8*lo)*32+lo

def prologue(a, cfg):
    pf=""
    if cfg.get('pf_code',1):
        pf=f"""
        s_getpc_b64 s[28:29]
L_pc1:
        s_sub_u32 s28, s28, L_pc1-{KNAME}
        s_subb_u32 s29, s29, 0
        s_lshr_b32 s20, s2, 3
        s_lshl_b32 s20, s20, 12
        v_lshl_add_u32 v200, v0, 4, s20
        v_min_u32 v200, L_tabend-{KNAME}-16, v200
        global_load_dwordx4 v[204:207], v200, s[28:29]
        """
    a(f"""
    s_cmp_ge_u32 s2, {NWG+NHELP}
    s_cbranch_scc1 L_end
    @PFCODE@
    s_load_dwordx16 s[36:51], s[0:1], 0
    s_load_dwordx8 s[52:59], s[0:1], 64
    s_load_dwordx4 s[60:63], s[0:1], 96
    v_and_b32 v1, 63, v0
    v_lshrrev_b32 v2, 6, v0
    s_nop 0
    v_readfirstlane_b32 s{S_WAVE}, v2
    s_mov_b32 s{S_ONES}, 0x3f803f80
    s_cmp_lt_u32 s2, {NHELP}
    s_cbranch_scc1 L_helper
    s_sub_u32 s2, s2, {NHELP}
    s_and_b32 s{S_XCD}, s2, 7
    s_lshr_b32 s{S_K}, s2, 3
    s_mul_i32 s{S_K7}, s{S_K}, 37
    s_lshr_b32 s{S_K7}, s{S_K7}, 8
    s_mul_i32 s{T0}, s{S_K7}, 7
    s_sub_u32 s{S_KM7}, s{S_K}, s{T0}
    s_waitcnt lgkmcnt(0)
    """.replace("@PFCODE@",pf))

VA_X=2
VB_PAR=66
VB_IDX=70
def phaseA_loads(a):
    a(f"""
    s_mul_i32 s{S_CH}, s{S_XCD}, 28
    s_add_u32 s{S_CH}, s{S_CH}, s{S_K}
    s_lshl_b32 s{T0}, s2, 2
    s_add_u32 s{T0}, s{T0}, s{S_WAVE}
    s_mul_i32 s{T1}, s{T0}, {4*896}
    s_lshl_b32 s{T0}, s{T0}, 5
    s_add_u32 s{T0}, s{T0}, {WS_STAT}
    s_cmp_lt_u32 s2, 128
    s_cselect_b32 s{T1}, s{T1}, 0x40000000
    s_cselect_b32 s{T0}, s{T0}, 0x40000000
    """)
    srd(a, SRD_A, P_X, 1835008)
    a(f"""
    s_lshl_b32 s{T3}, s{S_XCD}, 2
    s_add_u32 s{T3}, s{T3}, s{S_K7}
    s_mov_b32 s{S_RBA}, s{T3}
    s_mul_i32 s{T3}, s{T3}, 57344
    s_lshl_b32 s{T2}, s{S_KM7}, 7
    s_add_u32 s{T2}, s{T2}, s{T3}
    v_and_b32 v84, 7, v0
    v_lshrrev_b32 v85, 3, v0
    v_mul_u32_u24 v82, 896, v85
    v_lshl_add_u32 v82, v84, 4, v82
    v_add_u32 v83, 28672, v82
    buffer_load_dwordx4 v[58:61], v82, s[{SRD_A}:{SRD_A+3}], s{T2} offen
    buffer_load_dwordx4 v[62:65], v83, s[{SRD_A}:{SRD_A+3}], s{T2} offen
    v_mul_u32_u24 v110, {PA_ROW}, v85
    v_lshl_add_u32 v110, v84, 4, v110
    v_add_u32 v110, {PA_X}, v110
    """)
    a(f"""
    v_lshlrev_b32 v80, 4, v1
    v_cmp_gt_u32 vcc, 56, v1
    v_mov_b32 v81, 0x40000000
    v_cndmask_b32 v80, v81, v80, vcc
    """)
    for i in range(4):
        a(f"buffer_load_dwordx4 v[{2+4*i}:{5+4*i}], v80, s[{SRD_A}:{SRD_A+3}], s{T1} offen offset:{896*i}")

def phaseB_loads(a):
    a(f"""
    s_lshr_b32 s{T3}, s{S_WAVE}, 1
    s_lshl_b32 s{T4}, s{S_CH}, 1
    s_add_u32 s{T4}, s{T4}, s{T3}            ; d
    s_lshl_b32 s{T4}, s{T4}, 9
    s_and_b32 s{T5}, s{S_WAVE}, 1
    s_lshl_b32 s{T5}, s{T5}, 8
    s_add_u32 s{T4}, s{T4}, s{T5}
    v_lshl_add_u32 v84, v1, 2, s{T4}
    s_lshl_b32 s{T5}, s{S_CH}, 2
    s_load_dword s{S_LDT}, s[{P_LDT}:{P_LDT+1}], s{T5}
    s_load_dword s{S_DSK}, s[{P_DS}:{P_DS+1}], s{T5}
    global_load_dword v66, v84, s[{P_LA}:{P_LA+1}]
    global_load_dword v67, v84, s[{P_AI}:{P_AI+1}]
    global_load_dword v68, v84, s[{P_CR}:{P_CR+1}]
    global_load_dword v69, v84, s[{P_CI}:{P_CI+1}]
    s_getpc_b64 s[{T6}:{T7}]
L_pc0:
    s_add_u32 s{T6}, s{T6}, L_idxtab-L_pc0
    s_addc_u32 s{T7}, s{T7}, 0
    v_lshlrev_b32 v85, 5, v0
    global_load_dwordx4 v[70:73], v85, s[{T6}:{T7}]
    global_load_dword v74, v85, s[{T6}:{T7}] offset:16
    """)

def phaseA(a, cfg):
    a(f"""
    v_lshrrev_b32 v86, 3, v0
    v_mul_u32_u24 v86, {KC_COPY}, v86
    v_and_b32 v87, 7, v0
    v_lshl_add_u32 v86, v87, 4, v86
    v_mov_b32 v88, 0
    v_mov_b32 v89, 0
    v_mov_b32 v90, 0
    v_mov_b32 v91, 0
    v_lshrrev_b32 v92, 5, v0                    ; copy 0..7
    v_mul_u32_u24 v92, {UC_COPY}, v92
    v_and_b32 v93, 31, v0
    v_lshl_add_u32 v94, v93, 4, v92
    v_and_b32 v93, 3, v93
    v_lshl_add_u32 v95, v93, 4, v92
    ds_write_b128 v94, v[88:91] offset:{UC_OFF+316*16}
    ds_write_b128 v95, v[88:91] offset:{UC_OFF+348*16}
    v_cmp_gt_u32 vcc, 32, v0
    s_and_saveexec_b64 s[28:29], vcc
    s_cbranch_execz L_nozero
    ds_write_b128 v86, v[88:91] offset:{KC_OFF}
L_nozero:
    s_mov_b64 exec, s[28:29]
    """)
    a("s_waitcnt vmcnt(10)")
    a(f"ds_write_b128 v110, v[58:61]")
    a(f"ds_write_b128 v110, v[62:65] offset:{32*PA_ROW}")
    a(f"""
    v_lshrrev_b32 v113, 4, v1                  ; g
    v_and_b32 v114, 15, v1                     ; i
    v_lshrrev_b32 v115, 2, v114
    v_lshl_add_u32 v115, v113, 3, v115         ; row = 8g + (i>>2)
    v_mul_u32_u24 v115, {PA_ROW}, v115
    v_and_b32 v116, 3, v114
    v_lshl_add_u32 v115, v116, 3, v115
    s_lshl_b32 s{T3}, s{S_WAVE}, 5
    s_add_u32 s{T3}, s{T3}, {PA_X}
    v_add_u32 v115, s{T3}, v115
    s_lshl_b32 s{T3}, s{S_WAVE}, 4
    v_add_u32 v117, s{T3}, v114
    v_lshlrev_b32 v117, 12, v117
    v_lshl_add_u32 v117, v113, 4, v117          ; (16w+i)*4096 + g*16
    s_lshl_b32 s{T3}, s{S_KM7}, 18              ; cs*64*4096
    s_lshl_b32 s{T4}, s{S_RBA}, 7               ; rb*128
    s_add_u32 s{T6}, s{T3}, s{T4}
    s_add_u32 s{T6}, s{T6}, {WS_XT}
    s_waitcnt lgkmcnt(0)
    s_barrier
    """)
    for pr in range(2):
        r=120+4*pr
        a(f"ds_read_b64_tr_b16 v[{r}:{r+1}], v115 offset:{pr*32*PA_ROW}")
        a(f"ds_read_b64_tr_b16 v[{r+2}:{r+3}], v115 offset:{pr*32*PA_ROW+4*PA_ROW}")
    a("s_waitcnt lgkmcnt(0)")
    a(f"buffer_store_dwordx4 v[120:123], v117, s[{SRD_B}:{SRD_B+3}], s{T6} offen sc1")
    a(f"buffer_store_dwordx4 v[124:127], v117, s[{SRD_B}:{SRD_B+3}], s{T6} offen offset:64 sc1")
    a("s_waitcnt vmcnt(8)")
    stamp(a,cfg,'A.x0')
    for i in range(8): a(f"v_mov_b32 v{20+i}, 0")
    for j in range(4):
        for i in range(4):
            a(f"v_dot2c_f32_bf16 v{20+i}, s{S_ONES}, v{2+4*i+j}")
            a(f"v_dot2c_f32_bf16 v{24+i}, v{2+4*i+j}, v{2+4*i+j}")
    for q in (20,24):
        a(f"v_permlane32_swap_b32 v{q}, v{q+2}")
        a(f"v_permlane32_swap_b32 v{q+1}, v{q+3}")
    for q in (20,24):
        a(f"v_add_f32 v{q}, v{q}, v{q+2}")
        a(f"v_add_f32 v{q+1}, v{q+1}, v{q+3}")
    for q in (20,24): a(f"v_permlane16_swap_b32 v{q}, v{q+1}")
    for q in (20,24): a(f"v_add_f32 v{q}, v{q}, v{q+1}")
    for m in ("quad_perm:[1,0,3,2]","quad_perm:[2,3,0,1]","row_half_mirror","row_mirror"):
        a(f"v_add_f32_dpp v20, v20, v20 {m} row_mask:0xf bank_mask:0xf")
        a(f"v_add_f32_dpp v24, v24, v24 {m} row_mask:0xf bank_mask:0xf")
    a(f"""
    v_mul_f32 v20, 0x3b124925, v20             ; mean
    v_mul_f32 v24, 0x3b124925, v24
    v_fma_f32 v24, -v20, v20, v24
    v_max_f32 v24, 0, v24
    v_add_f32 v24, 0x3727c5ac, v24
    v_rsq_f32 v22, v24
    v_lshrrev_b32 v26, 4, v1
    v_lshlrev_b32 v26, 3, v26
    v_mul_f32 v23, v20, v22
    s_mov_b32 s28, 0x00010001
    s_mov_b32 s29, 0x00010001
    s_mov_b64 exec, s[28:29]
    buffer_store_dwordx2 v[22:23], v26, s[{SRD_B}:{SRD_B+3}], s{T0} offen sc1
    s_mov_b64 exec, -1
    s_lshl_b32 s{T1}, s2, 8
    s_add_u32 s{T1}, s{T1}, {WS_FLAG}
    s_cmp_lt_u32 s2, 88
    s_cselect_b32 s{T1}, s{T1}, 0x40000000
    v_mov_b32 v27, 0
    v_cmp_eq_u32 vcc, 0, v0
    s_and_saveexec_b64 s[28:29], vcc
    s_cbranch_execz L_noflag
    buffer_store_dword v27, v27, s[{SRD_B}:{SRD_B+3}], s{T1} offen sc1
L_noflag:
    s_mov_b64 exec, s[28:29]
    """)

def signal(a, name, dbg_off_sgpr=None, dbg_off=0):
    a("s_waitcnt vmcnt(0)")
    a("s_barrier")
    a(f"s_cmp_eq_u32 s{S_WAVE}, 0")
    a(f"s_cbranch_scc0 L_sig_{name}")
    a("s_mov_b64 exec, 1")
    if dbg_off_sgpr is not None: a(f"v_mov_b32 v250, s{dbg_off_sgpr}")
    else: a(f"v_mov_b32 v250, {dbg_off}")
    a("v_mov_b32 v251, 1")
    a(f"global_atomic_add v250, v251, s[{P_DBG}:{P_DBG+1}]")
    a("s_mov_b64 exec, -1")
    a(f"L_sig_{name}:")

def wait_issue(a, name, first_off, ncnt, vt=250, stride=4):
    a(f"v_min_u32 v{vt}, {ncnt-1}, v1")
    a(f"v_mul_u32_u24 v{vt}, {stride}, v{vt}")
    a(f"s_cmp_eq_u32 s{S_WAVE}, 0")
    a(f"s_cbranch_scc0 L_wi_{name}")
    a(f"global_load_dword v{vt+1}, v{vt}, s[{P_DBG}:{P_DBG+1}] offset:{first_off} sc1")
    a(f"L_wi_{name}:")

def wait(a, name, first_off, expect, vt=250):
    a(f"s_cmp_eq_u32 s{S_WAVE}, 0")
    a(f"s_cbranch_scc0 L_wait_{name}_done")
    a(f"s_mov_b32 s{S_POLL}, 0")
    a("s_waitcnt vmcnt(0)")
    a(f"v_cmp_gt_u32 vcc, {expect}, v{vt+1}")
    a(f"s_cbranch_vccz L_wait_{name}_done")
    a(f"L_wait_{name}:")
    a(f"global_load_dword v{vt+1}, v{vt}, s[{P_DBG}:{P_DBG+1}] offset:{first_off} sc1")
    a(f"s_add_u32 s{S_POLL}, s{S_POLL}, 1")
    a("s_waitcnt vmcnt(0)")
    a(f"v_cmp_gt_u32 vcc, {expect}, v{vt+1}")
    a(f"s_cmp_gt_u32 s{S_POLL}, 400000")
    a(f"s_cbranch_scc1 L_wait_{name}_done")
    a(f"s_cbranch_vccnz L_wait_{name}")
    a(f"L_wait_{name}_done:")
    a("s_barrier")

STAMPS=[]
def stamp(a,cfg,name):
    if not cfg.get('stamps'): return
    grp=str(cfg.get('stamps'))
    if grp=='T' and name not in ('start','end'): return
    if '.' in name:
        if name.split('.')[0] not in grp: return
    i=len(STAMPS); STAMPS.append(name)
    assert i<24
    a("s_memtime s[30:31]" if cfg.get('clk') else "s_memrealtime s[30:31]")
    a("s_waitcnt lgkmcnt(0)")
    a(f"s_mov_b32 s{78+i}, s30")
def dump_stamps(a,cfg):
    if not cfg.get('stamps'): return
    if cfg.get('dbgstamps'):
        a(f"s_cmp_eq_u32 s2, {cfg['dbgstamps']}")
        a("s_cbranch_scc0 L_end")
        a(f"s_cmp_eq_u32 s{S_WAVE}, 0")
        a("s_cbranch_scc0 L_end")
        a("s_mov_b64 exec, 1")
        for i in range(1,min(len(STAMPS),17)):
            a(f"s_sub_u32 s{T0}, s{78+i}, s78")
            a(f"v_mov_b32 v2, s{T0}")
            a(f"v_mov_b32 v3, {4*(i-1)}")
            a(f"global_store_dword v3, v2, s[{P_DBG}:{P_DBG+1}]")
        a("s_waitcnt vmcnt(0)")
        return
    srd(a, SRD_D, P_WS, WS_SIZE)
    n=len(STAMPS)
    a(f"s_lshl_b32 s{T0}, s2, 2")
    a(f"s_add_u32 s{T0}, s{T0}, s{S_WAVE}")
    a(f"s_lshl_b32 s{T0}, s{T0}, 7")
    a(f"s_add_u32 s{T0}, s{T0}, {WS_DBG+0x400000}")
    a("s_mov_b64 exec, 1")
    for i in list(range(n))+[23]:
        a(f"v_mov_b32 v2, s{78+i}")
        a(f"v_mov_b32 v3, {4*i}")
        a(f"buffer_store_dword v2, v3, s[{SRD_D}:{SRD_D+3}], s{T0} offen")
    a("s_waitcnt vmcnt(0)")

def warmup(a,cfg):
    if cfg.get('pf_tlb',1):
        a(f"""
        v_and_b32 v201, 15, v1
        v_lshlrev_b32 v201, 21, v201
        global_load_dword v208, v201, s[{P_WS}:{P_WS+1}]
        v_mov_b32 v202, 0
        global_load_dword v209, v202, s[{P_OUT}:{P_OUT+1}]
        global_load_dword v210, v202, s[{P_WG}:{P_WG+1}]
        global_load_dword v211, v202, s[{P_WU}:{P_WU+1}]
        global_load_dword v212, v202, s[{P_WD}:{P_WD+1}]
        global_load_dword v213, v202, s[{P_DBG}:{P_DBG+1}]
        """)

def build(cfg):
    a=Asm()
    prologue(a,cfg)
    stamp(a,cfg,'start')
    phaseA_loads(a)
    phaseB_loads(a)
    import phases2
    phases2.phaseC_pre(a,cfg)
    phaseA(a,cfg)
    stop=cfg.get('stop','')
    if stop=='A':
        a("s_waitcnt vmcnt(0)")
        a("s_branch L_end")
    import phases2
    phases2.rest(a,cfg)
    stamp(a,cfg,'end')
    dump_stamps(a,cfg)
    a("s_branch L_end")
    phases2.helper(a,cfg)
    a("L_end:")
    a("s_endpgm")
    body=a.finalize()
    ncode=(a.nbytes_est+8192+4095)//4096-1
    body=body.replace("@NCODE@",str(ncode))
    tab=[]
    for t in range(256):
        row=[2*tab_index(8*t-1+i) for i in range(9)]+[0]*7
        tab.append(".short "+", ".join(str(x) for x in row))
    hdr=open(os.path.join(os.path.dirname(os.path.abspath(__file__)),"header.txt")).read()
    txt=hdr.replace("@LAUNCH@", f"; @launch grid=({cfg.get('grid',NWG+NHELP)},1,1) block=(256,1,1) lds={LDS_TOTAL}")
    txt+=f""".amdgcn_target "amdgcn-amd-amdhsa--gfx950"
.text
.globl {KNAME}
.p2align 8
.type {KNAME},@function
{KNAME}:
{body}.p2align 6
L_idxtab:
""" + "\n".join(tab) + f"""
L_tabend:
.section .rodata,"a"
.p2align 6
.amdhsa_kernel {KNAME}
  .amdhsa_next_free_vgpr 512
  .amdhsa_next_free_sgpr 102
  .amdhsa_accum_offset 256
  .amdhsa_group_segment_fixed_size 0
  .amdhsa_kernarg_size 112
  .amdhsa_user_sgpr_count 2
  .amdhsa_user_sgpr_kernarg_segment_ptr 1
  .amdhsa_system_sgpr_workgroup_id_x 1
.end_amdhsa_kernel
"""
    return txt, a

if __name__=="__main__":
    cfg={}
    out=sys.argv[1]
    for kv in sys.argv[2:]:
        k,v=kv.split('='); cfg[k]=int(v) if v.isdigit() else v
    txt,a=build(cfg)
    open(out,"w").write(txt)
    if STAMPS: open(out+".stamps","w").write(" ".join(STAMPS))
    print(f"wrote {out}: {a.ninstr} instrs, {a.nnops} auto nops, {len(txt)} bytes")
```

```python
from gen import *

LOG2E = 0x3fb8aa3b
INV2PI = 0x3e22f983

def cmul(a, z, p, q):
    a(f"v_pk_mul_f32 v[{z}:{z+1}], v[{p}:{p+1}], v[{q}:{q+1}] op_sel:[0,0] op_sel_hi:[0,1]")
    a(f"v_pk_fma_f32 v[{z}:{z+1}], v[{p}:{p+1}], v[{q}:{q+1}], v[{z}:{z+1}] op_sel:[1,1,0] op_sel_hi:[1,0,1] neg_lo:[0,1,0]")

def cmul2(a, z, p, q):
    for j in range(2):
        o=40*j
        a(f"v_pk_mul_f32 v[{z+o}:{z+o+1}], v[{p+o}:{p+o+1}], v[{q+o}:{q+o+1}] op_sel:[0,0] op_sel_hi:[0,1]")
    for j in range(2):
        o=40*j
        a(f"v_pk_fma_f32 v[{z+o}:{z+o+1}], v[{p+o}:{p+o+1}], v[{q+o}:{q+o+1}], v[{z+o}:{z+o+1}] op_sel:[1,1,0] op_sel_hi:[1,0,1] neg_lo:[0,1,0]")

class Rot:
    def __init__(s,base,n,step): s.base,s.n,s.step,s.i=base,n,step,0
    def next(s):
        r=s.base+s.step*(s.i%s.n); s.i+=1; return r

def sig1(a,cfg):
    a("s_waitcnt vmcnt(0)")
    a("s_barrier")
    a(f"s_cmp_eq_u32 s{S_WAVE}, 0")
    a("s_cbranch_scc0 L_s1_skip")
    a(f"""
    s_mov_b32 s{S_POLL}, 0
    s_branch L_z_chk
    L_z:
    global_load_dword v251, v250, s[{P_DBG}:{P_DBG+1}] sc1
    s_add_u32 s{S_POLL}, s{S_POLL}, 1
    s_waitcnt vmcnt(0)
    L_z_chk:
    v_cmp_eq_u32 vcc, 0, v251
    s_cmp_gt_u32 s{S_POLL}, 400000
    s_cbranch_scc1 L_z_done
    s_cbranch_vccnz L_z
    L_z_done:
    {"s_mov_b32 s101, s"+str(S_POLL) if cfg.get('stamps') else ""}
    s_lshl_b32 s{T5}, s{S_KM7}, 11
    s_add_u32 s{T5}, s{T5}, {WS_FLAG+FL_S1}
    s_mov_b64 exec, 0xff
    v_lshlrev_b32 v252, 8, v1
    v_mov_b32 v251, 1
    buffer_atomic_add v251, v252, s[{SRD_B}:{SRD_B+3}], s{T5} offen
    s_mov_b64 exec, -1
    L_s1_skip:
    """)
    if cfg.get('pf_w2',1):
        a(f"""
        s_cmp_eq_u32 s{S_WAVE}, 2
        s_cselect_b32 s{SRD_A}, s{P_WU}, s{P_WG}
        s_cselect_b32 s{SRD_A+1}, s{P_WU+1}, s{P_WG+1}
        s_and_b32 s{SRD_A+1}, s{SRD_A+1}, 0xffff
        s_mov_b32 s{SRD_A+2}, {D*F*2}
        s_mov_b32 s{SRD_A+3}, 0x20000
        s_lshl_b32 s{T4}, s{S_K}, 4
        s_mul_i32 s{T4}, s{T4}, 3584
        s_and_b32 s{T5}, s{S_XCD}, 1
        s_mul_i32 s{T5}, s{T5}, 1792
        s_add_u32 s{T4}, s{T4}, s{T5}
        s_sub_u32 s{T5}, s{S_WAVE}, 1
        s_cmp_lt_u32 s{T5}, 2
        s_cselect_b32 s{T4}, s{T4}, 0x40000000
        v_min_u32 v252, 55, v1
        v_mul_u32_u24 v251, 4682, v252
        v_lshrrev_b32 v251, 16, v251            ; lane/14
        v_mul_u32_u24 v250, 14, v251
        v_sub_u32 v252, v252, v250              ; lane%14
        v_lshlrev_b32 v252, 7, v252
        v_mul_u32_u24 v251, 3584, v251
        v_add_u32 v252, v252, v251
        """)
        for j in range(4):
            a(f"s_add_u32 s{T5}, s{T4}, {j*4*3584}")
            a(f"buffer_load_dword v255, v252, s[{SRD_A}:{SRD_A+3}], s{T5} offen")
    stamp(a,cfg,'sig1')

def phaseB(a, cfg):
    R=80
    AL,BE,E1,E2,E4,W8,E256,X0 = R,R+1,R+2,R+4,R+6,R+8,R+10,R+12
    CA=R+14
    MM=R+22
    CB=R+24
    TT=R+32
    pk=Rot(160,8,2)
    a(f"""
    s_waitcnt lgkmcnt(0)
    s_lshr_b32 s{T3}, s{S_WAVE}, 1
    s_lshl_b32 s{T3}, s{T3}, 4
    s_lshr_b32 s{T4}, s{S_LDT}, s{T3}
    s_lshl_b32 s{T4}, s{T4}, 16
    v_mov_b32 v76, {LOG2E}
    v_mul_f32 v76, s{T4}, v76
    v_exp_f32 v76, v76
    v_cvt_pk_bf16_f32 v76, v76, v76
    v_lshlrev_b32 v76, 16, v76
    v_mul_f32 v77, 0xbfb8aa3b, v76         ; -dt*log2e
    v_mul_f32 v78, {INV2PI}, v76           ; dt/(2pi)
    v_add_f32 v79, v76, v76                ; 2dt
    s_waitcnt vmcnt(5)
    """)
    for j in range(2):
        o=40*j
        un=(lambda d,s: f"v_lshlrev_b32 v{d}, 16, v{s}") if j==0 else (lambda d,s: f"v_and_b32 v{d}, 0xffff0000, v{s}")
        a(un(TT+o,66)); a(un(BE+o,67)); a(un(X0+o,68)); a(un(X0+1+o,69))
        a(f"v_mul_f32 v{TT+o}, {LOG2E}, v{TT+o}")
        a(f"v_exp_f32 v{TT+o}, v{TT+o}")
    a(f"v_cvt_pk_bf16_f32 v{TT+1}, v{TT}, v{TT+40}")
    a(f"v_lshlrev_b32 v{AL}, 16, v{TT+1}")
    a(f"v_and_b32 v{AL+40}, 0xffff0000, v{TT+1}")
    for j in range(2):
        o=40*j
        a(f"""
        v_mul_f32 v{AL+o}, v{AL+o}, v77
        v_mul_f32 v{BE+o}, v{BE+o}, v78
        v_mul_f32 v{X0+o}, v{X0+o}, v79
        v_mul_f32 v{X0+1+o}, v{X0+1+o}, v79
        """)
    for (dst,mul) in ((E1,None),(E256,256.0)):
        for j in range(2):
            o=40*j
            if mul:
                a(f"v_mul_f32 v{TT+o}, 0x43800000, v{AL+o}")
                a(f"v_mul_f32 v{TT+1+o}, 0x43800000, v{BE+o}")
                a(f"v_exp_f32 v{TT+o}, v{TT+o}")
                a(f"v_fract_f32 v{TT+1+o}, v{TT+1+o}")
            else:
                a(f"v_exp_f32 v{TT+o}, v{AL+o}")
                a(f"v_fract_f32 v{TT+1+o}, v{BE+o}")
            a(f"v_cos_f32 v{TT+2+o}, v{TT+1+o}")
            a(f"v_sin_f32 v{TT+3+o}, v{TT+1+o}")
        for j in range(2):
            o=40*j
            a(f"v_mul_f32 v{dst+o}, v{TT+o}, v{TT+2+o}")
            a(f"v_mul_f32 v{dst+1+o}, v{TT+o}, v{TT+3+o}")
    cmul2(a,E2,E1,E1); cmul2(a,E4,E2,E2); cmul2(a,W8,E4,E4)
    stamp(a,cfg,'B.setup')
    a(f"""
    s_mul_i32 s{T3}, s{S_WAVE}, {KG_WAVE}
    s_add_u32 s{T3}, s{T3}, {KG_OFF}
    v_lshl_add_u32 v75, v1, 3, s{T3}
    """)
    def wrow(row, src, neg):
        p=pk.next()
        n='-' if neg else ''
        a(f"v_cvt_pk_bf16_f32 v{p}, v{src}, {n}v{src+1}")
        a(f"v_cvt_pk_bf16_f32 v{p+1}, v{src+40}, {n}v{src+41}")
        a(f"ds_write_b64 v75, v[{p}:{p+1}] offset:{row*KG_ROW}")
    p=pk.next()
    a(f"v_mov_b32 v{p}, 0x3f80\nv_mov_b32 v{p+1}, 0x3f80")
    a(f"ds_write_b64 v75, v[{p}:{p+1}] offset:0")
    cmul2(a,CA+4,W8,W8)
    cmul2(a,CA+6,CA+4,W8)
    cmul2(a,MM,CA+4,CA+4)
    wrow(1,W8,True); wrow(2,CA+4,True); wrow(3,CA+6,True)
    cur=[None,W8,CA+4,CA+6]
    for g in range(1,8):
        dstb = CB if g%2==1 else CA
        for c in range(4):
            dst=dstb+2*c
            if g==1 and c==0:
                wrow(4,MM,True); cur[0]=MM
                continue
            if g==2 and c==0:
                cmul2(a,dst,MM,MM)
            else:
                cmul2(a,dst,cur[c],MM)
            cur[c]=dst
            wrow(4*g+c,dst,True)
        if g==cfg.get('sig_at',3)-1:
            a(f"v_mov_b32 v250, {DBG_Z}")
            a(f"s_cmp_eq_u32 s{S_WAVE}, 0")
            a("s_cbranch_scc0 L_zi")
            a(f"global_load_dword v251, v250, s[{P_DBG}:{P_DBG+1}] sc1")
            a("L_zi:")
        if g==cfg.get('sig_at',3): sig1(a,cfg)
    stamp(a,cfg,'B.Y')
    pfl=[]
    def pf(n=1):
        for _ in range(n):
            if pfl:
                for x in pfl.pop(0): a(x)
    a(f"""
    v_and_b32 v156, 31, v1
    v_mul_u32_u24 v156, {KG_ROW}, v156
    v_lshrrev_b32 v157, 5, v1
    v_lshl_add_u32 v156, v157, 4, v156
    v_add_u32 v156, s{T3}, v156
    s_waitcnt lgkmcnt(0)
    """)
    for s in range(16):
        a(f"ds_read_b128 v[{176+4*s}:{179+4*s}], v156 offset:{32*s}")
        if s==11: a("s_waitcnt lgkmcnt(8)")
    XA=CA; XB=CB
    xs=[X0, CA, CA+2, CA+4, CA+6, CB, CB+2, CB+4]
    cmul2(a,xs[1],X0,E1); pf()
    cmul2(a,xs[2],X0,E2); pf()
    cmul2(a,xs[3],xs[1],E2); pf()
    cmul2(a,xs[4],X0,E4); pf()
    cmul2(a,xs[5],xs[1],E4); pf()
    cmul2(a,xs[6],xs[2],E4); pf()
    cmul2(a,xs[7],xs[3],E4); pf()
    a("s_waitcnt lgkmcnt(0)")
    for i in range(8):
        wrow(i,xs[i],False)
        if i%2==1: pf()
    x256,x258,x260,x262,x512,x516,x768,x772 = CA,CA+2,CA+4,CA+6,CB,CB+2,CB+4,CB+6
    cmul2(a,x256,X0,E256); wrow(8,x256,False); pf()
    cmul2(a,x512,x256,E256)
    cmul2(a,x258,x256,E2); wrow(9,x258,False); pf()
    cmul2(a,x260,x256,E4); wrow(10,x260,False); pf()
    cmul2(a,x768,x512,E256)
    cmul2(a,x262,x258,E4); wrow(11,x262,False); pf()
    wrow(12,x512,False)
    cmul2(a,x516,x512,E4); wrow(13,x516,False); pf()
    wrow(14,x768,False)
    cmul2(a,x772,x768,E4); wrow(15,x772,False)
    chain=[CA,CA+2,CA+4,CA+6,MM]
    prev=x768
    for i,dst in enumerate(chain):
        cmul2(a,dst,prev,E256); wrow(16+i,dst,False); prev=dst
    pf(16)
    a("s_waitcnt lgkmcnt(0)")
    for s in range(16):
        r=2+4*s
        a(f"ds_read_b128 v[{r}:{r+3}], v156 offset:{32*s}")
        if s==11: a("s_waitcnt lgkmcnt(8)")
    for s in range(16):
        if s==4: a("s_waitcnt lgkmcnt(4)")
        if s==0: a("s_waitcnt lgkmcnt(12)") if False else None
        if s==12: a("s_waitcnt lgkmcnt(0)")
        r=2+4*s
        c = "0" if s==0 else "a[0:15]"
        if s==8: a("s_waitcnt lgkmcnt(0)")
        a(f"v_mfma_f32_32x32x16_bf16 a[0:15], v[{r}:{r+3}], v[{176+4*s}:{179+4*s}], {c}")
    stamp(a,cfg,'B.mfma')
    a(f"""
    s_mul_i32 s{T3}, s{S_WAVE}, 3072
    s_add_u32 s{T3}, s{T3}, {TP_OFF}
    v_and_b32 v76, 31, v1
    v_lshlrev_b32 v76, 2, v76
    v_lshrrev_b32 v77, 5, v1
    v_lshl_add_u32 v76, v77, 9, v76
    v_add_u32 v76, s{T3}, v76
    """)
    for v in range(12):
        a(f"ds_write_b32 v76, a{v} offset:{(8*(v>>2)+(v&3))*128}")
    a("s_waitcnt lgkmcnt(0)")
    a("s_barrier")
    a(f"""
    v_lshlrev_b32 v76, 3, v0
    v_lshrrev_b32 v77, 7, v0
    v_and_b32 v78, 127, v0
    v_add_u32 v78, 256, v78
    v_mul_u32_u24 v79, 6144, v77
    v_lshl_add_u32 v79, v78, 3, v79
    v_mul_u32_u24 v80, {TF_CH}, v77
    v_lshl_add_u32 v80, v78, 2, v80
    v_lshlrev_b32 v81, 2, v0
    ds_read_b64 v[82:83], v76 offset:{TP_OFF}
    ds_read_b64 v[84:85], v76 offset:{TP_OFF+3072}
    ds_read_b64 v[86:87], v76 offset:{TP_OFF+6144}
    ds_read_b64 v[88:89], v76 offset:{TP_OFF+9216}
    ds_read_b64 v[90:91], v79 offset:{TP_OFF}
    ds_read_b64 v[92:93], v79 offset:{TP_OFF+3072}
    v_and_b32 v94, 1, v0
    v_mul_u32_u24 v94, {TF_CH}, v94
    v_mov_b32 v95, 0
    ds_write_b32 v94, v95 offset:{TF_OFF+1536}
    s_waitcnt lgkmcnt(0)
    v_add_f32 v82, v82, v84
    v_add_f32 v83, v83, v85
    v_add_f32 v86, v86, v88
    v_add_f32 v87, v87, v89
    v_add_f32 v90, v90, v92
    v_add_f32 v91, v91, v93
    v_cvt_pk_bf16_f32 v82, v82, v83
    v_cvt_pk_bf16_f32 v86, v86, v87
    v_cvt_pk_bf16_f32 v90, v90, v91
    ds_write_b32 v81, v82 offset:{TF_OFF}
    ds_write_b32 v81, v86 offset:{TF_OFF+TF_CH}
    ds_write_b32 v80, v90 offset:{TF_OFF}
    s_waitcnt lgkmcnt(0)
    s_barrier
    """)
    wait1_issue(a)
    for i in range(9):
        src=70+(i>>1)
        a(f"v_and_b32 v{76+i}, 0xffff, v{src}" if i%2==0 else f"v_lshrrev_b32 v{76+i}, 16, v{src}")
    for ch in range(2):
        d=86+10*ch
        for i in range(9):
            a(f"ds_read_u16 v{d+i}, v{76+i} offset:{TF_OFF+ch*TF_CH}")
        if ch==0: a("s_waitcnt lgkmcnt(4)")
    a(f"v_lshlrev_b32 v85, 4, v0")
    for ch in range(2):
        d=86+10*ch
        a(f"s_waitcnt lgkmcnt({9 if ch==0 else 2})")
        e=108+8*ch
        for j in range(4):
            a(f"v_lshl_or_b32 v{e+j}, v{d+2*j+1}, 16, v{d+2*j}")
            a(f"v_lshl_or_b32 v{e+4+j}, v{d+2*j+2}, 16, v{d+2*j+1}")
        a(f"ds_write_b128 v85, v[{e}:{e+3}] offset:{KC_OFF+ch*KC_CH+7*16}")
        a(f"ds_write_b128 v85, v[{e+4}:{e+7}] offset:{KC_OFF+ch*KC_CH+KC_COPY+7*16}")

def dumpK(a):
    a("s_waitcnt lgkmcnt(0)")
    a("s_barrier")
    srd(a, SRD_B, P_WS, WS_SIZE)
    a(f"s_mul_i32 s{T3}, s2, 16896")
    a(f"s_add_u32 s{T3}, s{T3}, {WS_DBG}")
    for m in range(5):
        a(f"v_add_u32 v76, {256*m}, v0")
        a(f"v_lshlrev_b32 v76, 4, v76")
        a(f"v_cmp_gt_u32 vcc, 16896, v76")
        a(f"s_and_saveexec_b64 s[28:29], vcc")
        a(f"s_cbranch_execz L_dk{m}")
        a(f"ds_read_b128 v[80:83], v76 offset:{KC_OFF}")
        a("s_waitcnt lgkmcnt(0)")
        a(f"buffer_store_dwordx4 v[80:83], v76, s[{SRD_B}:{SRD_B+3}], s{T3} offen")
        a(f"L_dk{m}:")
        a("s_mov_b64 exec, s[28:29]")
    a("s_waitcnt vmcnt(0)")


S_RB, S_FS, S_RB2, S_NT, S_WCOL = 73, 74, 75, 76, 77
S_WDB, S_ROW = 34, 35
STAT_OFF = 114688
V_SG, V_SU, V_ONE = 192, 208, 224
FL_S2, FL_EARLY, FL_LATE, FL_S1 = 0, 56*256, 72*256, 88*256
N_FLAG_LINES = 144
DBG_Z, DBG_W2 = 128, 144

def ids(a):
    a(f"""
    s_lshr_b32 s{T7}, s{S_XCD}, 1
    s_lshl_b32 s{T7}, s{T7}, 2
    s_add_u32 s{S_RB}, s{T7}, s{S_K7}
    s_and_b32 s{T7}, s{S_XCD}, 1
    s_mul_i32 s{T7}, s{T7}, 7
    s_add_u32 s{S_FS}, s{T7}, s{S_KM7}         ; GEMM1 f slice    fs = 7*(x&1) + k%7
    s_lshl_b32 s{S_RB2}, s{S_XCD}, 2
    s_add_u32 s{S_RB2}, s{S_RB2}, s{S_K7}
    s_mov_b32 s{S_NT}, s{S_KM7}
    s_lshl_b32 s{S_WCOL}, s{S_FS}, 8
    s_lshl_b32 s{T7}, s{S_WAVE}, 6
    s_add_u32 s{S_WCOL}, s{S_WCOL}, s{T7}
    """)

def flag_add(a,name,nl,soff,vt):
    a(f"s_cmp_eq_u32 s{S_WAVE}, 0")
    a(f"s_cbranch_scc0 L_fa_{name}")
    a(f"s_mov_b64 exec, {(1<<nl)-1}")
    a(f"v_lshlrev_b32 v{vt}, 8, v1")
    a(f"v_mov_b32 v{vt+1}, 1")
    a(f"buffer_atomic_add v{vt+1}, v{vt}, s[{SRD_B}:{SRD_B+3}], s{soff} offen")
    a("s_mov_b64 exec, -1")
    a(f"L_fa_{name}:")

def flag_poll_issue(a,vt,soff):
    a(f"buffer_load_dword v{vt+1}, v{vt}, s[{SRD_B}:{SRD_B+3}], s{soff} offen sc1")

def flag_wait(a,name,expect,vt,soff,first_issued=False,nnewer=0):
    a(f"s_mov_b32 s{S_POLL}, 0")
    if first_issued:
        a(f"s_waitcnt vmcnt({nnewer})")
        a(f"v_cmp_gt_u32 vcc, {expect}, v{vt+1}")
        a(f"s_cbranch_vccz L_fw_{name}_done")
    a(f"L_fw_{name}:")
    flag_poll_issue(a,vt,soff)
    a(f"s_add_u32 s{S_POLL}, s{S_POLL}, 1")
    a("s_waitcnt vmcnt(0)")
    a(f"v_cmp_gt_u32 vcc, {expect}, v{vt+1}")
    a(f"s_cmp_gt_u32 s{S_POLL}, 400000")
    a(f"s_cbranch_scc1 L_fw_{name}_done")
    a(f"s_cbranch_vccnz L_fw_{name}")
    a(f"L_fw_{name}_done:")

def phaseC_pre(a,cfg):
    a(f"""
    v_sub_u32 v136, 255, v0                    ; unit J1 = 255 - o
    v_lshrrev_b32 v137, 3, v136
    v_lshl_add_u32 v137, v137, 1, v136
    v_lshlrev_b32 v137, 4, v137
    v_add_u32 v240, {UC_OFF}, v137
    v_sub_u32 v136, 254, v0
    v_lshrrev_b32 v137, 3, v136
    v_lshl_add_u32 v137, v137, 1, v136
    v_lshlrev_b32 v137, 4, v137
    v_cmp_eq_u32 vcc, 255, v0
    v_mov_b32 v138, 128
    v_cndmask_b32 v137, v137, v138, vcc
    v_add_u32 v241, {UC_OFF}, v137
    """)
    ids(a)
    a(f"""
    s_lshr_b32 s{T4}, s{S_WAVE}, 1            ; ch
    s_and_b32 s{T5}, s{S_WAVE}, 1             ; h2
    v_and_b32 v141, 15, v1                      ; r / col
    v_lshrrev_b32 v142, 4, v1                   ; q
    v_and_b32 v143, 1, v141
    v_mul_u32_u24 v143, {KC_COPY}, v143
    v_lshrrev_b32 v144, 1, v141
    v_add_u32 v144, v144, v142
    v_lshl_add_u32 v246, v144, 4, v143
    s_mul_i32 s{T6}, s{T4}, {KC_CH}
    s_lshl_b32 s{T7}, s{T5}, 8
    s_add_u32 s{T6}, s{T6}, s{T7}
    s_add_u32 s{T6}, s{T6}, {KC_OFF}
    v_add_u32 v246, s{T6}, v246
    v_and_b32 v143, 3, v141                       ; b
    v_mul_u32_u24 v143, {UC_COPY}, v143
    v_lshrrev_b32 v144, 2, v141                   ; cc
    v_mul_u32_u24 v145, 10, v144
    v_sub_u32 v145, 30, v145
    v_add_u32 v145, v145, v142
    v_lshl_add_u32 v247, v145, 4, v143
    s_mul_i32 s{T6}, s{T4}, {UC_CH}
    s_mul_i32 s{T7}, s{T5}, 320
    s_add_u32 s{T6}, s{T6}, s{T7}
    s_add_u32 s{T6}, s{T6}, {UC_OFF}
    v_add_u32 v247, s{T6}, v247
    v_and_b32 v143, 3, v141
    v_lshlrev_b32 v143, 3, v143                   ; 2b*4
    v_lshl_add_u32 v143, v142, 6, v143              ; +16q*4
    v_mul_u32_u24 v145, 288, v144                 ; cc*(256+32)
    v_add_u32 v143, v143, v145
    s_mul_i32 s{T6}, s{S_WAVE}, {PC_PW}
    s_add_u32 s{T6}, s{T6}, {PC_P}
    v_add_u32 v248, s{T6}, v143
    v_lshlrev_b32 v254, 4, v0
    v_lshrrev_b32 v141, 2, v1
    v_mul_u32_u24 v249, 3584, v141
    v_and_b32 v142, 3, v1
    v_lshl_add_u32 v249, v142, 4, v249
    v_lshrrev_b32 v142, 4, v1                   ; G
    v_and_b32 v143, 15, v1                      ; i16
    v_lshrrev_b32 v144, 1, v142
    v_lshlrev_b32 v144, 3, v144
    v_lshrrev_b32 v145, 2, v143
    v_add_u32 v144, v144, v145
    v_lshlrev_b32 v144, 6, v144                   ; row*64
    v_and_b32 v145, 1, v142
    v_lshl_add_u32 v144, v145, 5, v144
    v_and_b32 v145, 3, v143
    v_lshl_add_u32 v253, v145, 3, v144
    s_mul_i32 s33, s{S_WAVE}, {18*1024}
    s_add_u32 s33, s33, {KG_OFF}
    v_add_u32 v253, s33, v253
    """)
    srd(a, SRD_B, P_WS, WS_SIZE)
    srd(a, SRD_C, P_WG, D*F*2)
    srd(a, SRD_D, P_WU, D*F*2)

def phaseC_loads(a,cfg,ws):
    a(f"v_lshlrev_b32 v15, 6, v0")
    a(f"s_mov_b32 s{T5}, {WS_STAT}")
    for i in range(4):
        a(f"buffer_load_dwordx4 v[{16+4*i}:{19+4*i}], v15, s[{SRD_B}:{SRD_B+3}], s{T5} offen offset:{16*i} sc1")
    a(f"s_lshl_b32 s{T5}, s{S_CH}, 13")
    a(f"s_add_u32 s{T5}, s{T5}, {WS_XT}")
    a(f"buffer_load_dwordx4 v[176:179], v254, s[{SRD_B}:{SRD_B+3}], s{T5} offen sc1")
    a(f"s_add_u32 s{T5}, s{T5}, 4096")
    a(f"buffer_load_dwordx4 v[180:183], v254, s[{SRD_B}:{SRD_B+3}], s{T5} offen sc1")
    ws.dma(6)
    a("s_waitcnt vmcnt(6)")
    stamp(a,cfg,'C.ld')
    for ch in range(2):
        for e in range(8):
            a(f"v_lshlrev_b32 v{32+8*ch+e}, 16, v{176+4*ch+(e>>1)}" if e%2==0 else f"v_and_b32 v{32+8*ch+e}, 0xffff0000, v{176+4*ch+(e>>1)}")
    for e in range(8):
        a(f"v_fma_f32 v{32+e}, v{32+e}, v{16+2*e}, -v{17+2*e}")
        a(f"v_fma_f32 v{40+e}, v{40+e}, v{16+2*e}, -v{17+2*e}")
    for ch in range(2):
        for i in range(4):
            a(f"v_cvt_pk_bf16_f32 v{184+4*ch+i}, v{32+8*ch+7-2*i}, v{32+8*ch+6-2*i}")
    stamp(a,cfg,'C.nrm')
    for ch in range(2):
        d=184+4*ch; o=ch*UC_CH
        a(f"ds_write_b128 v240, v[{d}:{d+3}] offset:{o+3*UC_COPY}")
        a(f"ds_write_b64 v241, v[{d}:{d+1}] offset:{o+1*UC_COPY+8}")
        a(f"ds_write_b64 v240, v[{d+2}:{d+3}] offset:{o+1*UC_COPY}")
        for b in (0,2):
            for i in range(4):
                if i>=3-b: a(f"ds_write_b32 v240, v{d+i} offset:{o+b*UC_COPY+4*(i-3+b)}")
                else: a(f"ds_write_b32 v241, v{d+i} offset:{o+b*UC_COPY+4*(i+b+1)}")
        if ch==0: a("s_waitcnt lgkmcnt(4)")

NS_W = 18
W1_OFF, W1_WAVE = KG_OFF, NS_W*1024
S_WL = 33

class VM:
    def __init__(s): s.n=0
    def add(s): s.n+=1; return s.n-1
    def after(s,k): return s.n-1-k

class WStage:
    def __init__(s,a,vm): s.a=a; s.vm=vm; s.d=0; s.t=0; s.pos={}; s.sm=0
    def dma_ins(s):
        i=s.d; s.d+=1
        out=[]
        if i%2==0: out.append(f"s_add_u32 s{T7}, s{S_WCOL}, {(i>>1)*57344}")
        out.append(f"s_add_u32 m0, s{S_WL}, {(i%NS_W)*1024}")
        sd=SRD_C if i%2==0 else SRD_D
        out.append((f"buffer_load_dwordx4 v249, s[{sd}:{sd+3}], s{T7} offen lds", i))
        return out
    def emit(s,x):
        if isinstance(x,tuple):
            s.a(x[0]); s.pos[x[1]]=s.vm.add()
        else: s.a(x)
    def dma(s,n=1):
        for _ in range(n):
            if s.d<56:
                for x in s.dma_ins(): s.emit(x)
    def tr(s,n=1):
        for _ in range(n):
            if s.t>=56: return
            i=s.t; s.t+=1
            s.a(f"s_waitcnt vmcnt({min(63,s.vm.after(s.pos[i]))})")
            s.a(f"ds_read_b64_tr_b16 a[{4*i}:{4*i+1}], v253 offset:{(i%NS_W)*1024}")
            s.a(f"ds_read_b64_tr_b16 a[{4*i+2}:{4*i+3}], v253 offset:{(i%NS_W)*1024+256}")
    def smfma(s,upto):
        while s.sm<upto:
            i=s.sm; s.sm+=1
            dst=V_SG if i%2==0 else V_SU
            c="0" if i<2 else f"v[{dst}:{dst+15}]"
            s.a(f"v_mfma_f32_32x32x16_bf16 v[{dst}:{dst+15}], v[{V_ONE}:{V_ONE+3}], a[{4*i}:{4*i+3}], {c}")

def phaseC(a,cfg,vm,ws):
    AS=[16,80]; BS=[48,112]; ACC=144
    a(f"s_waitcnt lgkmcnt(0)")
    a("s_barrier")
    stamp(a,cfg,'C.dma')
    def reads(c):
        st=c&1; out=[]
        for j in range(8):
            out.append(f"ds_read_b128 v[{BS[st]+4*j}:{BS[st]+4*j+3}], v247 offset:{(40*(7-j)+4*c+2*(c>>1))*16}")
            out.append(f"ds_read_b128 v[{AS[st]+4*j}:{AS[st]+4*j+3}], v246 offset:{512*j+64*c}")
        return out
    r0=reads(0)
    for i,x in enumerate(r0):
        a(x)
        if i==11: a("s_waitcnt lgkmcnt(8)")
    for c in range(4):
        st=c&1
        nxt=reads(c+1) if c<3 else []
        a("s_waitcnt lgkmcnt(0)")
        n=0
        for sp in range(8):
            for t in range(sp,8):
                cc = "0" if (c==0 and sp==0) else f"v[{ACC+4*t}:{ACC+4*t+3}]"
                a(f"v_mfma_f32_16x16x32_bf16 v[{ACC+4*t}:{ACC+4*t+3}], v[{AS[st]+4*sp}:{AS[st]+4*sp+3}], v[{BS[st]+4*(t-sp)}:{BS[st]+4*(t-sp)+3}], {cc}")
                n+=1
                if n%2==0 and nxt: a(nxt.pop(0))
                if c<2 and n%6==3: ws.dma()
                if c==2 and n%4==1 and ws.t<9: ws.tr()
                if c==3:
                    if n%4==1 and ws.d<27: ws.dma()
                    if n%4==3 and ws.t<18: ws.tr()
    assert ws.d==27 and ws.t==18, (ws.d,ws.t)
    stamp(a,cfg,'C.main')
    a("s_barrier")
    for t in range(8):
        a(f"ds_write_b64 v248, v[{ACC+4*t}:{ACC+4*t+1}] offset:{1152*t}")
        a(f"ds_write_b64 v248, v[{ACC+4*t+2}:{ACC+4*t+3}] offset:{1152*t+32}")
    a(f"""
    v_lshlrev_b32 v13, 5, v0                  ; o*32
    v_lshrrev_b32 v14, 3, v0
    v_lshl_add_u32 v13, v14, 5, v13           ; + (o>>3)*32
    s_lshl_b32 s{T2}, s{S_DSK}, 16            ; D[ch0]
    s_and_b32 s{T3}, s{S_DSK}, 0xffff0000     ; D[ch1]
    s_lshl_b32 s{T4}, s{S_CH}, 13
    s_add_u32 s{T4}, s{T4}, {WS_HT}
    s_add_u32 s{T5}, s{T4}, 4096
    s_waitcnt lgkmcnt(0)
    s_barrier
    """)
    for ch in range(2):
        b=16+32*ch
        for hf in range(2):
            for k in range(2):
                a(f"ds_read_b128 v[{b+8*hf+4*k}:{b+8*hf+4*k+3}], v13 offset:{PC_P+(2*ch+hf)*PC_PW+16*k}")
    ws.dma(4)
    kst=None
    for ch in range(2):
        b=16+32*ch; xr=176+4*ch; sd=T2+ch
        a(f"s_waitcnt lgkmcnt({4 if ch==0 else 0})")
        ur=184+4*ch
        for e in range(8):
            ue=7-e
            a(f"v_add_f32 v{b+e}, v{b+e}, v{b+8+e}")
            a(f"v_lshlrev_b32 v{b+20}, 16, v{xr+(e>>1)}" if e%2==0 else f"v_and_b32 v{b+20}, 0xffff0000, v{xr+(e>>1)}")
            a(f"v_lshlrev_b32 v{b+21}, 16, v{ur+(ue>>1)}" if ue%2==0 else f"v_and_b32 v{b+21}, 0xffff0000, v{ur+(ue>>1)}")
            a(f"v_add_f32 v{b+e}, v{b+e}, v{b+20}")
            a(f"v_fma_f32 v{b+e}, v{b+21}, s{sd}, v{b+e}")
            if e in (2,5) and ws.d<35: ws.dma()
        for j in range(4):
            a(f"v_cvt_pk_bf16_f32 v{b+24+j}, v{b+2*j}, v{b+2*j+1}")
        a(f"buffer_store_dwordx4 v[{b+24}:{b+27}], v254, s[{SRD_B}:{SRD_B+3}], s{T4+ch} offen sc1")
        kst=vm.add()
    stamp(a,cfg,'C_done')
    ws.dma(36-ws.d)
    a(f"""
    v_mov_b32 v{V_ONE}, s{S_ONES}
    v_mov_b32 v{V_ONE+1}, s{S_ONES}
    v_mov_b32 v{V_ONE+2}, s{S_ONES}
    v_mov_b32 v{V_ONE+3}, s{S_ONES}
    """)
    for _ in range(9):
        ws.tr()
        if ws.t%4==0: a("s_waitcnt lgkmcnt(6)")
    ws.smfma(9)
    a(f"s_waitcnt vmcnt({vm.after(kst)}) lgkmcnt(0)")
    a("s_barrier")
    a(f"s_lshl_b32 s{T0}, s{S_KM7}, 11")
    a(f"s_add_u32 s{T0}, s{T0}, {WS_FLAG+FL_S2}")
    flag_add(a,'s2',8,T0,2)

def stageW2(a,cfg,vm,ws):
    rnd=0
    while ws.t<56:
        nd=min(9,56-ws.d)
        for _ in range(nd):
            ws.dma(); ws.smfma(min(ws.sm+2,ws.t))
        rnd+=1
        if rnd==cfg.get('w2poll',3): wait2_issue(a)
        nt=min(9,56-ws.t)
        for k in range(nt):
            ws.tr()
            if k%4==3: a("s_waitcnt lgkmcnt(6)")
        a("s_waitcnt lgkmcnt(0)")
    ws.smfma(56)
    a(f"""
    v_mov_b32 v200, v{V_SG}
    v_mov_b32 v201, v{V_SU}
    v_cmp_gt_u32 vcc, 32, v1
    """)
    for (src,dst) in ((200,192),(201,196)):
        a(f"""
        v_cvt_pk_bf16_f32 v202, v{src}, v{src}
        v_lshlrev_b32 v203, 16, v202
        v_sub_f32 v203, v{src}, v203
        v_cvt_pk_bf16_f32 v203, v{src}, v203
        v_and_b32 v202, 0xffff, v202
        v_cndmask_b32 v{dst}, 0, v203, vcc
        v_cndmask_b32 v{dst+1}, 0, v202, vcc
        v_mov_b32 v{dst+2}, 0
        v_mov_b32 v{dst+3}, 0
        """)
    a("v_mov_b32 v202, 0")
    a("v_mov_b32 v203, 0")

SLP=[0]
def wait1_issue(a):
    a(f"""
    v_min_u32 v250, 6, v1
    v_lshlrev_b32 v250, 11, v250
    s_lshl_b32 s{T6}, s{S_XCD}, 8
    s_add_u32 s{T6}, s{T6}, {WS_FLAG+FL_S1}
    s_cmp_eq_u32 s{S_WAVE}, 0
    s_cbranch_scc0 L_w1i
    buffer_load_dword v251, v250, s[{SRD_B}:{SRD_B+3}], s{T6} offen sc1
    L_w1i:
    """)

def wait1(a,cfg):
    if cfg.get('stamps') and cfg.get('w1vm'):
        a("s_waitcnt vmcnt(0)"); stamp(a,cfg,'w1vm')
    a(f"s_cmp_eq_u32 s{S_WAVE}, 0")
    a("s_cbranch_scc0 L_w1_skip")
    a(f"""
    s_mov_b32 s{S_POLL}, 0
    s_branch L_w1_chk
    L_w1:
    {"s_sleep "+str(SLP[0]) if SLP[0] else ""}
    buffer_load_dword v251, v250, s[{SRD_B}:{SRD_B+3}], s{T6} offen sc1
    s_add_u32 s{S_POLL}, s{S_POLL}, 1
    L_w1_chk:
    s_waitcnt vmcnt(0)
    v_cmp_gt_u32 vcc, 32, v251
    s_cmp_gt_u32 s{S_POLL}, 400000
    s_cbranch_scc1 L_w1_done
    s_cbranch_vccnz L_w1
    L_w1_done:
    {"s_mov_b32 s101, s"+str(S_POLL) if cfg.get('stamps') else ""}
    L_w1_skip:
    s_barrier
    """)

def wait2_issue(a):
    a(f"""
    v_min_u32 v2, 6, v1
    v_lshlrev_b32 v2, 11, v2
    s_lshl_b32 s{T0}, s{S_XCD}, 8
    s_add_u32 s{T0}, s{T0}, {WS_FLAG+FL_S2}
    v_mov_b32 v5, {DBG_W2}
    s_cmp_eq_u32 s{S_WAVE}, 0
    s_cbranch_scc0 L_w2i
    buffer_load_dword v3, v2, s[{SRD_B}:{SRD_B+3}], s{T0} offen sc1
    global_load_dword v4, v5, s[{P_DBG}:{P_DBG+1}] sc1
    L_w2i:
    """)

def wait2(a,cfg):
    a(f"s_cmp_eq_u32 s{S_WAVE}, 0")
    a("s_cbranch_scc0 L_w2_skip")
    a(f"""
    s_mov_b32 s{S_POLL}, 0
    s_branch L_w2_chk
    L_w2:
    buffer_load_dword v3, v2, s[{SRD_B}:{SRD_B+3}], s{T0} offen sc1
    global_load_dword v4, v5, s[{P_DBG}:{P_DBG+1}] sc1
    s_add_u32 s{S_POLL}, s{S_POLL}, 1
    L_w2_chk:
    s_waitcnt vmcnt(0)
    v_cmp_gt_u32 s[28:29], {NHELP}, v4
    v_cmp_gt_u32 vcc, 32, v3
    s_cmp_gt_u32 s{S_POLL}, 400000
    s_cbranch_scc1 L_w2_done
    s_or_b64 vcc, vcc, s[28:29]
    s_cbranch_vccnz L_w2
    L_w2_done:
    L_w2_skip:
    s_barrier
    """)

WD_PRE = [('v',140+4*i) for i in range(13)] + [('v',224+4*i) for i in range(8)] + [('a',224+4*i) for i in range(8)] + [('v',96+4*i) for i in range(3)]
def wd_reg(i):
    f,r = WD_PRE[i] if i<32 else ('a',4*(i-32))
    return f"{f}[{r}:{r+3}]"

def phaseD(a,cfg):
    ACC=[16,48]; RING=80; MR=112
    a(f"""
    v_lshrrev_b32 v2, 4, v1
    v_lshlrev_b32 v3, 2, v2
    v_and_b32 v4, 15, v1
    v_xor_b32 v4, v4, v3
    v_lshlrev_b32 v4, 4, v4
    v_lshl_add_u32 v14, v2, 12, v4
    s_lshl_b32 s{T0}, s{S_RB}, 8
    s_lshl_b32 s{T1}, s{S_WAVE}, 14
    s_add_u32 s{T0}, s{T0}, s{T1}
    s_add_u32 s{T0}, s{T0}, {WS_HT}
    s_lshl_b32 s{T1}, s{S_WAVE}, 10
    """)
    def hdma(i):
        return [f"s_add_u32 s{T2}, s{T0}, {i*65536}", f"s_add_u32 m0, s{T1}, {i*4096}",
                f"buffer_load_dwordx4 v14, s[{SRD_B}:{SRD_B+3}], s{T2} offen sc1 lds"]
    for i in range(14):
        for x in hdma(i): a(x)
    a(f"""
    v_lshrrev_b32 v10, 4, v1                   ; G
    v_and_b32 v11, 15, v1                      ; i16
    v_lshrrev_b32 v12, 2, v11                  ; r
    v_lshrrev_b32 v13, 1, v10
    v_lshl_add_u32 v13, v13, 3, v12            ; 8hh + r
    v_lshlrev_b32 v13, 8, v13
    v_and_b32 v15, 1, v10
    v_lshl_add_u32 v13, v15, 5, v13
    v_and_b32 v15, 3, v11
    v_lshl_add_u32 v13, v15, 3, v13
    """)
    for j in range(4):
        a(f"v_xor_b32 v15, {j}, v12")
        a(f"v_lshl_add_u32 v{2+j}, v15, 6, v13")
        a(f"v_add_u32 v{6+j}, 0x10000, v{2+j}")
    a(f"""
    v_xor_b32 v15, s{S_WAVE}, v12
    v_lshl_add_u32 v10, v15, 6, v13
    v_add_u32 v15, 0x10000, v10
    v_lshlrev_b32 v11, 4, v1
    v_mov_b32 v120, 0
    v_mov_b32 v121, 0
    v_mov_b32 v122, 0
    v_mov_b32 v123, 0
    """)
    def rd(ad0,ad1,s_,r):
        ad=ad0 if s_<16 else ad1
        o=4096*(s_%16)
        return [f"ds_read_b64_tr_b16 v[{r}:{r+1}], v{ad} offset:{o}", f"ds_read_b64_tr_b16 v[{r+2}:{r+3}], v{ad} offset:{o+1024}"]
    PR=[140+4*q for q in range(7)]
    SRS=[[168,172,176,180,184,188,96],[204,208,212,216,220,100,104]]
    def dots(c):
        SR=SRS[c&1]
        for q in range(7):
            for e in range(4):
                a(f"v_dot2c_f32_bf16 v{120+(e&1)}, s{S_ONES}, v{SR[q]+e}")
                a(f"v_dot2c_f32_bf16 v{122+(e&1)}, v{SR[q]+e}, v{SR[q]+e}")
    for c in range(4):
        a(f"s_waitcnt vmcnt({7 if c<3 else 0})")
        a("s_barrier")
        SR=SRS[c&1]
        P=[rd(2,6,s_,PR[q]) for q,s_ in enumerate(range(7*c,7*c+7))]
        S=[rd(10,15,s_,SR[q]) for q,s_ in enumerate(range(7*c,7*c+7))]
        queue=[]
        def issue(tag,ins):
            for x in ins: a(x); queue.append(tag)
        for q in range(3): issue(('P',q),P[q])
        issue(('S',0),S[0])
        if c>0: dots(c-1)
        g=ACC[0]; u=g+16
        done=0
        for q,s_ in enumerate(range(7*c,7*c+7)):
            last=max(i for i,t in enumerate(queue) if t==('P',q))
            a(f"s_waitcnt lgkmcnt({len(queue)-1-last})"); done=last+1
            cg="0" if s_==0 else f"v[{g}:{g+15}]"; cu="0" if s_==0 else f"v[{u}:{u+15}]"
            a(f"v_mfma_f32_32x32x16_bf16 v[{g}:{g+15}], a[{8*s_}:{8*s_+3}], v[{PR[q]}:{PR[q]+3}], {cg}")
            if q+3<7: issue(('P',q+3),P[q+3])
            if c<2:
                for x in hdma(7*(c+2)+q): a(x)
            a(f"v_mfma_f32_32x32x16_bf16 v[{u}:{u+15}], a[{8*s_+4}:{8*s_+7}], v[{PR[q]}:{PR[q]+3}], {cu}")
            if q+1<7: issue(('S',q+1),S[q+1])
            assert len(queue)-done<=15, (c,q,len(queue)-done)
        a("s_waitcnt lgkmcnt(0)")
    steps=[(j,s_) for j in range(1,4) for s_ in range(28)]
    PF=3
    for k in range(PF):
        j,s_=steps[k]
        for x in rd(2+j,6+j,s_,RING+4*(s_%4)): a(x)
    dots(3)
    stamp(a,cfg,'D.p0')
    a(f"""
    s_lshl_b32 s{T0}, s{S_RB}, 2
    s_mul_i32 s{T0}, s{T0}, 112
    s_lshl_b32 s{T1}, s{S_FS}, 3
    s_add_u32 s{T0}, s{T0}, s{T1}
    s_lshl_b32 s{T1}, s{S_WAVE}, 1
    s_add_u32 s{T0}, s{T0}, s{T1}
    s_lshl_b32 s{T0}, s{T0}, 10
    s_add_u32 s{T0}, s{T0}, {WS_ACT}
    s_lshl_b32 s{S_WDB}, s{S_NT}, 2
    s_add_u32 s{S_WDB}, s{S_WDB}, s{S_WAVE}
    s_mul_i32 s{S_WDB}, s{S_WDB}, {56*1024}
    s_add_u32 s{S_WDB}, s{S_WDB}, {WS_WD}
    s_lshl_b32 s{T1}, s{S_WAVE}, 8
    """)
    fin=f"""v_add_f32 v120, v120, v121
    v_add_f32 v122, v122, v123
    v_mov_b32 v121, v120
    v_mov_b32 v123, v122
    v_and_b32 v124, 31, v1
    v_permlane32_swap_b32 v120, v121
    v_permlane32_swap_b32 v122, v123
    v_lshlrev_b32 v124, 3, v124
    v_add_f32 v120, v120, v121
    v_add_f32 v122, v122, v123
    v_mul_f32 v120, 0x3b124925, v120
    v_mul_f32 v122, 0x3b124925, v122
    v_add_u32 v123, {STAT_OFF}, v124
    v_fma_f32 v122, -v120, v120, v122
    v_max_f32 v122, 0, v122
    v_add_f32 v122, 0x3727c5ac, v122
    v_rsq_f32 v121, v122
    v_add_u32 v122, s{T1}, v123
    ds_write_b64 v122, v[120:121]""".split("\n")
    fin=[x.strip() for x in fin]
    vm=VM()
    def wd_load(i):
        out=[]
        if i%4==0: out.append(f"s_add_u32 s{T7}, s{S_WDB}, {i*1024}")
        out.append(f"buffer_load_dwordx4 {wd_reg(i)}, v11, s[{SRD_B}:{SRD_B+3}], s{T7} offen offset:{(i%4)*1024} sc1")
        return out
    def corr_build(j):
        m=MR+2*j
        return [f"v_cvt_pk_bf16_f32 v200, -v{m}, -v{m}", "v_lshlrev_b32 v204, 16, v200",
                f"v_sub_f32_e64 v204, -v{m}, v204", "v_cvt_pk_bf16_f32 v201, v204, 0"]
    def corr_mfma(j):
        g=ACC[j&1]; u=g+16
        return [f"v_mfma_f32_32x32x16_bf16 v[{g}:{g+15}], v[192:195], v[200:203], v[{g}:{g+15}]",
                f"v_mfma_f32_32x32x16_bf16 v[{u}:{u+15}], v[196:199], v[200:203], v[{u}:{u+15}]"]
    def epi(j):
        g=ACC[j&1]; u=g+16; m=MR+2*j; r=m+1
        c=124; ir2=125
        L_=[f"v_mul_f32 v{c}, 0xbfb8aa3b, v{r}", f"v_mul_f32 v{ir2}, v{r}, v{r}", f"v_rcp_f32 v{ir2}, v{ir2}"]
        T=[126,127,128,129]
        for v0 in range(0,16,4):
            vs=range(v0,v0+4)
            L_+=[f"v_mul_f32 v{T[v%4]}, v{c}, v{g+v}" for v in vs]
            for v in vs:
                L_+=[f"v_exp_f32 v{T[v%4]}, v{T[v%4]}", f"v_mul_f32 v{g+v}, v{g+v}, v{u+v}"]
            L_+=[f"v_fma_f32 v{T[v%4]}, v{T[v%4]}, v{ir2}, v{ir2}" for v in vs]
            L_+=[f"v_rcp_f32 v{T[v%4]}, v{T[v%4]}" for v in vs]
            L_+=[f"v_mul_f32 v{g+v}, v{g+v}, v{T[v%4]}" for v in vs]
            o=132+4*((v0>>3)&1)+((v0>>1)&3)
            L_+=[f"v_cvt_pk_bf16_f32 v{o}, v{g+v0}, v{g+v0+1}", f"v_cvt_pk_bf16_f32 v{o+1}, v{g+v0+2}, v{g+v0+3}"]
            if v0 in (4,12):
                o=132+4*((v0>>3)&1)
                L_.append(f"buffer_store_dwordx4 v[{o}:{o+3}], v11, s[{SRD_B}:{SRD_B+3}], s{T2} offen offset:{1024*(v0>>3)} sc1")
        return L_
    def emit(x):
        a(x)
        if x.startswith('buffer_'): return vm.add()
    def cost(x):
        if x.startswith('buffer_'): return cfg.get('c_vm',20)
        if x.startswith(('v_exp','v_rcp','v_rsq')): return 8
        if x.startswith('v_mfma'): return 8
        return 4
    BUD=cfg.get('bud',24)
    pend=[]; loads=[]; wdn=0; last_early_store=None
    state={'k':None}
    def fill(left,j,allow_epi):
        nonlocal last_early_store
        if loads and left>=cfg.get('ldmin',18):
            for x in loads.pop(0):
                emit(x); left-=cost(x)
        while allow_epi and pend and left>=cost(pend[0])-1:
            x=pend.pop(0); k=emit(x); left-=cost(x)
            if x.startswith('buffer_store') and j==2: last_early_store=k
        return left
    ldsq=[]
    for k in range(PF): ldsq+=[('r',k),('r',k)]
    for n,(j,s_) in enumerate(steps):
        o=5 if j==1 else 0
        if s_==0:
            if j>1: stamp(a,cfg,f'D.p{j-1}')
            a(f"s_add_u32 s{T2}, s{T0}, {(j-1)*112*1024}")
            pend=epi(j-1)
            if cfg.get('x_noepi'): pend=[x for x in pend if x.startswith('buffer_store')]
        if not cfg.get('x_nowd'):
            if j<3 and wdn<32 and n>=1 and ((n-1)*32)//52>=wdn:
                loads.append(wd_load(wdn)); wdn+=1
            if j==3 and 2<=s_<=25: loads.append(wd_load(32+s_-2))
        else:
            wdn=32
        rds=[]
        if n+PF<len(steps):
            jj,ss=steps[n+PF]
            rds=rd(2+jj,6+jj,ss,RING+4*(ss%4))
        if rds: a(rds[0]); ldsq.append(('r',n+PF))
        last=max(i for i,t in enumerate(ldsq) if t==('r',n))
        if j==1 and s_==o+1:
            last=max(last,max(i for i,t in enumerate(ldsq) if t==('m',0)))
        a(f"s_waitcnt lgkmcnt({min(15,len(ldsq)-1-last)})")
        g=ACC[j&1]; u=g+16; b=RING+4*(s_%4)
        cg="0" if s_==0 else f"v[{g}:{g+15}]"; cu="0" if s_==0 else f"v[{u}:{u+15}]"
        a(f"v_mfma_f32_32x32x16_bf16 v[{g}:{g+15}], a[{8*s_}:{8*s_+3}], v[{b}:{b+3}], {cg}")
        left=BUD
        if rds: a(rds[1]); ldsq.append(('r',n+PF)); left-=4
        if j==1 and s_<3:
            for _ in range(4):
                if fin:
                    x=fin.pop(0); a(x); left-=4
                    if x.startswith('ds_'): ldsq.append(('w',0))
        if s_==o+1:
            for x in corr_build(j-1): a(x)
            left-=16
        if s_==o+2: a(corr_mfma(j-1)[0]); left=BUD
        fill(left,j,s_>=o+4)
        a(f"v_mfma_f32_32x32x16_bf16 v[{u}:{u+15}], a[{8*s_+4}:{8*s_+7}], v[{b}:{b+3}], {cu}")
        left=BUD-6
        if j==1 and s_<3:
            for _ in range(4):
                if fin:
                    x=fin.pop(0); a(x); left-=4
                    if x.startswith('ds_'): ldsq.append(('w',0))
        if j==1 and s_==3:
            assert not fin
            lw=max(i for i,t in enumerate(ldsq) if t==('w',0))
            a(f"s_waitcnt lgkmcnt({len(ldsq)-1-lw})")
            a("s_barrier")
            for q in range(4):
                a(f"ds_read_b64 v[{MR+2*q}:{MR+2*q+1}], v123 offset:{256*q}"); ldsq.append(('m',0))
        if s_==o+2: a(corr_mfma(j-1)[1]); left=BUD-6
        if j==3 and s_==25:
            for x in corr_build(3): a(x)
            left-=16
        fill(left,j,s_>=o+4)
        if s_==27:
            while pend:
                x=pend.pop(0); k=emit(x)
                if x.startswith('buffer_store') and j==2: last_early_store=k
            if j>=2:
                while loads:
                    for x in loads.pop(0): emit(x)
        if j==3 and s_==cfg.get('early_at',12):
            a(f"s_waitcnt vmcnt({vm.after(last_early_store)})")
            a(f"s_lshl_b32 s{T1}, s{S_RB}, 8")
            a(f"s_add_u32 s{T1}, s{T1}, {WS_FLAG+FL_EARLY}")
            a("s_mov_b64 exec, 1")
            a("v_mov_b32 v130, 0")
            a("v_mov_b32 v131, 1")
            a(f"buffer_atomic_add v131, v130, s[{SRD_B}:{SRD_B+3}], s{T1} offen")
            a("s_mov_b64 exec, -1")
            vm.add()
    assert wdn==32
    for x in corr_mfma(3): a(x)
    stamp(a,cfg,'D.p3')
    a(f"""
    s_lshr_b32 s{T3}, s{S_RB2}, 1
    s_lshl_b32 s{T3}, s{T3}, 8
    s_add_u32 s{T4}, s{T3}, {WS_FLAG+FL_LATE}
    s_add_u32 s{T3}, s{T3}, {WS_FLAG+FL_EARLY}
    v_mov_b32 v130, 0
    s_cmp_eq_u32 s{S_WAVE}, 0
    s_cbranch_scc0 L_ep_skip
    """)
    flag_poll_issue(a,130,T3)
    a("L_ep_skip:")
    a(f"s_add_u32 s{T2}, s{T0}, {3*112*1024}")
    for x in epi(3): a(x)
    stamp(a,cfg,'D_done')
    a(f"s_cmp_eq_u32 s{S_WAVE}, 0")
    a("s_cbranch_scc0 L_ew_skip")
    flag_wait(a,'early',56,130,T3,first_issued=True,nnewer=2)
    a("L_ew_skip:")
    a("s_barrier")

def phaseE(a,cfg):
    RING=96; ACC=16; HRES=208
    a(f"""
    s_lshr_b32 s{T0}, s{S_RB2}, 1
    s_lshl_b32 s{T0}, s{T0}, 2
    s_and_b32 s{T1}, s{S_RB2}, 1
    s_add_u32 s{T0}, s{T0}, s{T1}
    s_lshl_b32 s{S_ROW}, s{T0}, 5
    s_mul_i32 s{T0}, s{T0}, 112
    s_mul_i32 s{T1}, s{S_WAVE}, 28
    s_add_u32 s{T0}, s{T0}, s{T1}
    s_lshl_b32 s{T0}, s{T0}, 10
    s_add_u32 s{T0}, s{T0}, {WS_ACT}
    """)
    vm=VM(); pos={}
    def ld(t,lt):
        r=RING+4*t
        if t%4==0: a(f"s_add_u32 s{T2+lt*3}, s{T0}, {t*1024+lt*2*112*1024}")
        a(f"buffer_load_dwordx4 a[{r}:{r+3}], v11, s[{SRD_B}:{SRD_B+3}], s{T2+lt*3} offen offset:{(t%4)*1024} sc1")
        pos[(t,lt)]=vm.add()
    AH=cfg.get('e_ahead',14)
    for t in range(8): ld(t,0)
    a("s_waitcnt vmcnt(0)")
    a("s_barrier")
    a(f"s_lshl_b32 s{T1}, s{S_RB}, 8")
    a(f"s_add_u32 s{T1}, s{T1}, {WS_FLAG+FL_LATE}")
    flag_add(a,'late',1,T1,130)
    stamp(a,cfg,'sig3')
    for t in range(8,AH): ld(t,0)
    a(f"""
    v_and_b32 v5, 3, v0
    v_lshlrev_b32 v5, 16, v5
    v_lshrrev_b32 v6, 2, v0
    v_lshrrev_b32 v7, 5, v6
    v_lshl_add_u32 v6, v7, 5, v6
    v_lshl_add_u32 v5, v6, 1, v5
    s_lshl_b32 s{T3}, s{S_NT}, 18
    s_lshl_b32 s{T1}, s{S_ROW}, 1
    s_add_u32 s{T3}, s{T3}, s{T1}
    s_add_u32 s{T3}, s{T3}, {WS_HT}
    v_mov_b32 v130, 0
    """)
    def hres(e):
        a(f"s_add_u32 s{T1}, s{T3}, {e*4096}")
        a(f"buffer_load_ushort a{HRES+e}, v5, s[{SRD_B}:{SRD_B+3}], s{T1} offen sc1")
        vm.add()
    def step(t,lt):
        b=RING+4*t
        for nt2 in range(2):
            d=ACC+16*(2*lt+nt2)
            c="0" if t==0 else f"v[{d}:{d+15}]"
            a(f"v_mfma_f32_32x32x16_bf16 v[{d}:{d+15}], {wd_reg(2*t+nt2)}, a[{b}:{b+3}], {c}")
    TP=cfg.get('e_poll',12); TC=cfg.get('e_chk',20)
    nl=0
    for t in range(28):
        a(f"s_waitcnt vmcnt({vm.after(pos[(t,0)])})")
        step(t,0)
        if t+AH<28: ld(t+AH,0)
        elif t<TC and t-(28-AH)<16 and t>=28-AH: pass
        if t==TP:
            a(f"s_cmp_eq_u32 s{S_WAVE}, 0")
            a("s_cbranch_scc0 L_lp_skip")
            flag_poll_issue(a,130,T4)
            a("L_lp_skip:")
            kpoll=vm.n-1
        if t==TC:
            a(f"s_cmp_eq_u32 s{S_WAVE}, 0")
            a("s_cbranch_scc0 L_lw_skip")
            flag_wait(a,'late',14,130,T4,first_issued=True,nnewer=vm.after(kpoll))
            a("L_lw_skip:")
            a("s_barrier")
            stamp(a,cfg,'wait3')
        if t>=TC:
            for _ in range(2):
                if nl<=t and nl<AH+2: ld(nl,1); nl+=1
    stamp(a,cfg,'E.early')
    while nl<AH: ld(nl,1); nl+=1
    hn=0
    for t in range(28):
        a(f"s_waitcnt vmcnt({vm.after(pos[(t,1)])})")
        step(t,1)
        if nl<28: ld(nl,1); nl+=1
        elif hn<16:
            hres(hn); hres(hn+1); hn+=2
    while hn<16: hres(hn); hn+=1
    stamp(a,cfg,'E.main')
    a(f"""
    v_and_b32 v3, 31, v1
    v_mul_u32_u24 v3, 272, v3
    v_lshrrev_b32 v4, 5, v1
    v_lshl_add_u32 v3, v4, 4, v3
    s_mul_i32 s{T1}, s{S_WAVE}, 17408
    v_add_u32 v3, s{T1}, v3
    v_lshrrev_b32 v4, 2, v0
    v_mul_u32_u24 v4, 272, v4
    v_and_b32 v5, 3, v0
    v_lshl_add_u32 v4, v5, 6, v4
    """)
    for lt in range(2):
        for nt2 in range(2):
            d=ACC+16*(2*lt+nt2)
            for g in range(4):
                a(f"ds_write_b128 v3, v[{d+4*g}:{d+4*g+3}] offset:{lt*8704+nt2*128+g*32}")
    srd(a, SRD_A, P_OUT, L*D*2)
    a(f"""
    v_mul_u32_u24 v6, 896, v6
    v_lshl_add_u32 v6, v5, 5, v6
    s_mul_i32 s{T1}, s{S_ROW}, 896
    s_lshl_b32 s{T2}, s{S_NT}, 7
    s_add_u32 s{T1}, s{T1}, s{T2}
    s_waitcnt lgkmcnt(0)
    s_barrier
    """)
    for pw in range(4):
        for i in range(4):
            r=96+16*pw+4*i
            a(f"ds_read_b128 v[{r}:{r+3}], v4 offset:{pw*17408+16*i}")
        if pw==2: a("s_waitcnt lgkmcnt(4)")
    a("s_waitcnt vmcnt(0)")
    for e in range(16):
        a(f"v_accvgpr_read_b32 v{80+e}, a{208+e}")
    for e in range(16):
        a(f"v_lshlrev_b32 v{80+e}, 16, v{80+e}")
    a("s_waitcnt lgkmcnt(0)")
    for e in range(16):
        a(f"v_add_f32 v{96+e}, v{96+e}, v{112+e}")
        a(f"v_add_f32 v{128+e}, v{128+e}, v{144+e}")
        a(f"v_add_f32 v{96+e}, v{96+e}, v{80+e}")
        a(f"v_add_f32 v{96+e}, v{96+e}, v{128+e}")
    for j in range(8):
        a(f"v_cvt_pk_bf16_f32 v{16+j}, v{96+2*j}, v{97+2*j}")
    a(f"buffer_store_dwordx4 v[16:19], v6, s[{SRD_A}:{SRD_A+3}], s{T1} offen")
    a(f"buffer_store_dwordx4 v[20:23], v6, s[{SRD_A}:{SRD_A+3}], s{T1} offen offset:16")

def rest(a,cfg):
    st=lambda n: stamp(a,cfg,n)
    stop=cfg.get('stop','')
    if stop=='A': return
    st('A_done')
    phaseB(a,cfg)
    if stop=='K':
        dumpK(a); a("s_branch L_end"); return
    st('B_done')
    SLP[0]=cfg.get('w1sleep',0)
    wait1(a,cfg)
    st('wait1')
    vm=VM(); ws=WStage(a,vm)
    phaseC_loads(a,cfg,ws)
    phaseC(a,cfg,vm,ws)
    st('sig2')
    stageW2(a,cfg,vm,ws)
    st('stgGU')
    wait2(a,cfg)
    st('wait2')
    phaseD(a,cfg)
    phaseE(a,cfg)

def helper(a,cfg):
    a("L_helper:")
    hs=[0]
    def hst():
        if not cfg.get('stamps'): return
        a("s_memrealtime s[30:31]"); a("s_waitcnt lgkmcnt(0)"); a(f"s_mov_b32 s{78+hs[0]}, s30"); hs[0]+=1
    a("s_waitcnt lgkmcnt(0)")
    hst()
    srd(a, SRD_B, P_WS, WS_SIZE)
    a(f"""
    s_lshl_b32 s30, s2, 2
    s_add_u32 s30, s30, s{S_WAVE}
    s_cmp_eq_u32 s30, 0
    s_cbranch_scc0 L_h_nozero
    v_lshlrev_b32 v16, 8, v1
    v_mov_b32 v17, 0
    global_load_dword v18, v17, s[{P_DBG}:{P_DBG+1}] sc1
    s_mov_b32 s30, {WS_FLAG+FL_S1}
    buffer_store_dword v17, v16, s[{SRD_B}:{SRD_B+3}], s30 offen sc1
    s_waitcnt vmcnt(0)
    s_mov_b64 exec, 1
    v_mov_b32 v16, {DBG_Z}
    v_mov_b32 v17, 1
    global_atomic_add v16, v17, s[{P_DBG}:{P_DBG+1}]
    s_mov_b64 exec, -1
    L_h_nozero:
    """)
    hst()
    a(f"""
    s_lshl_b32 s{T0}, s2, 2
    s_add_u32 s{T0}, s{T0}, s{S_WAVE}          ; V
    v_lshrrev_b32 v2, 2, v1
    v_and_b32 v3, 3, v1
    v_mul_u32_u24 v7, 896, v2
    v_lshl_add_u32 v7, v3, 4, v7
    s_mul_i32 s{T5}, s{S_WAVE}, 40960
    s_lshr_b32 s{T1}, s{T0}, 4                 ; nt
    s_bfe_u32 s{T2}, s{T0}, 0x20002            ; w2
    s_bfe_u32 s{T3}, s{T0}, 0x10001            ; nt2
    s_and_b32 s{T4}, s{T0}, 1                  ; half
    s_mul_i32 s{T6}, s{T2}, 448
    s_mul_i32 s{T7}, s{T4}, 224
    s_add_u32 s{T6}, s{T6}, s{T7}
    s_mul_i32 s{T6}, s{T6}, 896
    s_lshl_b32 s{T7}, s{T1}, 7
    s_add_u32 s{T6}, s{T6}, s{T7}
    s_lshl_b32 s{T7}, s{T3}, 6
    s_add_u32 s{T6}, s{T6}, s{T7}
    """)
    if cfg.get('pf_tlb',1):
        a(f"""
        v_and_b32 v201, 15, v1
        v_lshlrev_b32 v201, 21, v201
        global_load_dword v208, v201, s[{P_WS}:{P_WS+1}]
        v_mov_b32 v202, 0
        global_load_dword v209, v202, s[{P_OUT}:{P_OUT+1}]
        global_load_dword v210, v202, s[{P_WG}:{P_WG+1}]
        global_load_dword v211, v202, s[{P_WU}:{P_WU+1}]
        global_load_dword v213, v202, s[{P_DBG}:{P_DBG+1}]
        """)
    srd(a, SRD_A, P_WD, F*D*2)
    for t in range(14):
        a(f"s_add_u32 s{T7}, s{T6}, {t*16*896}")
        a(f"s_add_u32 m0, s{T5}, {t*1024}")
        a(f"buffer_load_dwordx4 v7, s[{SRD_A}:{SRD_A+3}], s{T7} offen lds")
    a(f"""
    v_lshrrev_b32 v3, 4, v1                    ; G
    v_and_b32 v4, 15, v1                       ; i16
    v_lshrrev_b32 v8, 2, v4                    ; r
    v_lshrrev_b32 v9, 1, v3                    ; hh
    v_and_b32 v10, 1, v3
    v_lshlrev_b32 v10, 5, v10
    v_and_b32 v11, 3, v4
    v_lshl_add_u32 v10, v11, 3, v10            ; 32(G&1) + 8(i16&3)
    v_add_u32 v10, s{T5}, v10
    v_lshl_add_u32 v11, v9, 2, v8              ; 4hh + r
    v_lshl_add_u32 v13, v11, 6, v10
    v_lshlrev_b32 v14, 4, v1
    s_lshl_b32 s{T6}, s{T1}, 2
    s_add_u32 s{T6}, s{T6}, s{T2}
    s_mul_i32 s{T6}, s{T6}, 56
    s_mul_i32 s{T7}, s{T4}, 28
    s_add_u32 s{T6}, s{T6}, s{T7}
    s_add_u32 s{T6}, s{T6}, s{T3}
    s_lshl_b32 s{T6}, s{T6}, 10
    s_add_u32 s{T6}, s{T6}, {WS_WD}
    """)
    srd(a, SRD_B, P_WS, WS_SIZE)
    a("s_waitcnt vmcnt(0)")
    hst()
    for t in range(14):
        r=16+4*t
        a(f"ds_read_b64_tr_b16 v[{r}:{r+1}], v13 offset:{t*1024}")
        a(f"ds_read_b64_tr_b16 v[{r+2}:{r+3}], v13 offset:{t*1024+512}")
        if t in (5,10): a("s_waitcnt lgkmcnt(4)")
    a("s_waitcnt lgkmcnt(0)")
    for t in range(14):
        r=16+4*t
        a(f"s_add_u32 s{T1}, s{T6}, {t*2048}")
        a(f"buffer_store_dwordx4 v[{r}:{r+3}], v14, s[{SRD_B}:{SRD_B+3}], s{T1} offen sc1")
    a("s_waitcnt vmcnt(0)")
    a("s_barrier")
    hst()
    a(f"s_cmp_eq_u32 s{S_WAVE}, 0")
    a("s_cbranch_scc0 L_h_nosig")
    a(f"""
    s_mov_b64 exec, 1
    v_mov_b32 v2, {DBG_W2}
    v_mov_b32 v3, 1
    global_atomic_add v2, v3, s[{P_DBG}:{P_DBG+1}]
    s_mov_b64 exec, -1
    L_h_nosig:
    """)
    hst()
    if cfg.get('pf_w',0):
        a(f"""
        s_lshr_b32 s{T3}, s{S_WAVE}, 1
        s_cmp_eq_u32 s{T3}, 0
        s_cselect_b32 s{SRD_A}, s{P_WG}, s{P_WU}
        s_cselect_b32 s{SRD_A+1}, s{P_WG+1}, s{P_WU+1}
        s_and_b32 s{SRD_A+1}, s{SRD_A+1}, 0xffff
        s_mov_b32 s{SRD_A+2}, {D*F*2}
        s_mov_b32 s{SRD_A+3}, 0x20000
        s_and_b32 s{T0}, s2, 7
        s_cmp_lt_u32 s{T0}, 4
        s_cselect_b32 s{T1}, 4, 3
        s_lshr_b32 s{T2}, s2, 3
        s_and_b32 s{T3}, s2, 1
        s_mul_i32 s{T3}, s{T3}, 1792
        s_and_b32 s{T4}, s{S_WAVE}, 1
        s_mul_i32 s{T4}, s{T4}, 896
        s_add_u32 s{T3}, s{T3}, s{T4}
        v_min_u32 v2, 55, v1
        v_lshlrev_b32 v2, 4, v2
        s_mul_i32 s{T5}, s{T1}, 3584
        s_mul_i32 s{T6}, s{T2}, 3584
        s_add_u32 s{T6}, s{T6}, s{T3}
        L_h_pf:
        """)
        for q in range(4):
            a(f"buffer_load_dwordx4 v[{16+4*q}:{19+4*q}], v2, s[{SRD_A}:{SRD_A+3}], s{T6} offen")
            a(f"s_add_u32 s{T6}, s{T6}, s{T5}")
        a(f"""
        s_waitcnt vmcnt(24)
        s_cmp_lt_u32 s{T6}, {D*F*2}
        s_cbranch_scc1 L_h_pf
        s_waitcnt vmcnt(0)
        """)
    hst()
    a(f"s_cmp_eq_u32 s{S_WAVE}, 0")
    a("s_cbranch_scc0 L_end")
    if cfg.get('stamps'):
        srd(a, SRD_D, P_WS, WS_SIZE)
        a(f"s_add_u32 s{T0}, s2, 224")
        a(f"s_lshl_b32 s{T0}, s{T0}, 2")
        a(f"s_lshl_b32 s{T0}, s{T0}, 7")
        a(f"s_add_u32 s{T0}, s{T0}, {WS_DBG+0x400000}")
        a("s_mov_b64 exec, 1")
        for i in range(hs[0]):
            a(f"v_mov_b32 v2, s{78+i}")
            a(f"v_mov_b32 v3, {4*i}")
            a(f"buffer_store_dword v2, v3, s[{SRD_D}:{SRD_D+3}], s{T0} offen")
        a("s_waitcnt vmcnt(0)")
```
